```python
import torch

def _softmax(x, axis=-1):
    return torch.softmax(x, dim=axis)
def _gelu(x):
    return torch.nn.functional.gelu(x, approximate="tanh")
def _silu(x):
    return torch.nn.functional.silu(x)
def _sigmoid(x):
    return torch.sigmoid(x)
def _layernorm(x, axis=-1, eps=1e-5):
    m = x.mean(dim=axis, keepdim=True)
    v = x.var(dim=axis, keepdim=True, unbiased=False)
    return (x - m) / torch.sqrt(v + eps)
def _scatter_add(tgt, idx, src, axis=0):
    return tgt.clone().index_add_(axis, idx, src)
def _segment_sum(src, seg, n):
    out = torch.zeros((n,) + src.shape[1:], dtype=src.dtype)
    return out.index_add_(0, seg, src)
def _pad(x, pw):
    flat = tuple(v for pair in reversed(pw) for v in pair)
    return torch.nn.functional.pad(x, flat)

kernel_name = 'interleave_layers__softmax_full_mha__dense_activation_squared_relu__prompt'

def setup_inputs():

    _w = (lambda a: (lambda t: t.to(torch.bfloat16) if t.is_floating_point() else t)(torch.as_tensor(a)))
    def _A_setup():
        B, S, D = 1, 2048, 448
        return {
            "x": _w((lambda *s: torch.randn(*s, dtype=torch.bfloat16) * 0.05)(B, S, D)),
            "wqkv": _w((lambda *s: torch.randn(*s, dtype=torch.bfloat16) * 0.05)(D, 3 * D)),
            "wo": _w((lambda *s: torch.randn(*s, dtype=torch.bfloat16) * 0.05)(D, D)),
        }
    _A_in = _A_setup()

    def _B_setup():
        B, S, D, F = 1, 2048, 448, 1792
        return {
            "x": _w((lambda *s: torch.randn(*s, dtype=torch.bfloat16) * 0.05)(B, S, D)),
            "w1": _w((lambda *s: torch.randn(*s, dtype=torch.bfloat16) * 0.05)(D, F)),
            "b1": _w((lambda *s: torch.randn(*s, dtype=torch.bfloat16) * 0.1)(F)),
            "w2": _w((lambda *s: torch.randn(*s, dtype=torch.bfloat16) * 0.05)(F, D)),
            "b2": _w((lambda *s: torch.randn(*s, dtype=torch.bfloat16) * 0.4)(D)),
        }
    _B_in = _B_setup()

    return {
        "A_x": _A_in["x"],
        "A_wqkv": _A_in["wqkv"],
        "A_wo": _A_in["wo"],
        "B_x": _B_in["x"],
        "B_w1": _B_in["w1"],
        "B_b1": _B_in["b1"],
        "B_w2": _B_in["w2"],
        "B_b2": _B_in["b2"],
    }

def reference(A_x, A_wqkv, A_wo, B_x, B_w1, B_b1, B_w2, B_b2):
    def _A_ref(x, wqkv, wo):
        B, S, D = x.shape
        H = 16; Dh = D // H
        qkv = (lambda x, *d: x.permute(*d))((x @ wqkv).reshape(B, S, 3, H, Dh), 2, 0, 3, 1, 4)
        q, k, v = qkv[0], qkv[1], qkv[2]
        scale = Dh ** -0.5
        scores = torch.einsum("bhqd,bhkd->bhqk", q, k) * scale
        p = _softmax(scores, axis=-1)
        o = torch.einsum("bhqk,bhkd->bhqd", p, v)
        return (lambda x, *d: x.permute(*d))(o, 0, 2, 1, 3).reshape(B, S, D) @ wo

    def _B_ref(x, w1, b1, w2, b2):
        h = torch.einsum("bsd,df->bsf", x, w1) + b1
        zero = torch.zeros_like(h)
        r = torch.where(h > zero, h, zero)
        h = r * r
        out = torch.einsum("bsf,fd->bsd", h, w2) + b2
        return out

    x = A_x
    x = x + _A_ref(_layernorm(x, axis=-1), A_wqkv, A_wo)
    x = x + _B_ref(_layernorm(x, axis=-1), B_w1, B_b1, B_w2, B_b2)
    x = x + _A_ref(_layernorm(x, axis=-1), A_wqkv, A_wo)
    x = x + _B_ref(_layernorm(x, axis=-1), B_w1, B_b1, B_w2, B_b2)
    return x
```

```python
import re

REG_RE = re.compile(r'^(-?\|?)([vas])(\d+)\|?$')
RNG_RE = re.compile(r'^(-?\|?)([vas])\[(\d+):(\d+)\]\|?$')


def regs_of(op):
    op = op.strip()
    m = RNG_RE.match(op)
    if m:
        return {(m.group(2), i) for i in range(int(m.group(3)), int(m.group(4)) + 1)}
    m = REG_RE.match(op)
    if m:
        return {(m.group(2), int(m.group(3)))}
    if op in ('vcc', 'vcc_lo', 'vcc_hi'):
        return {('vcc', 0)}
    if op in ('exec', 'exec_lo', 'exec_hi'):
        return {('exec', 0)}
    if op == 'm0':
        return {('m0', 0)}
    return set()


TRANS = ('v_exp_f32', 'v_log_f32', 'v_rcp_f32', 'v_rsq_f32', 'v_sqrt_f32', 'v_sin_f32', 'v_cos_f32')


class Ins:
    __slots__ = ('text', 'op', 'ops', 'rd', 'wr', 'kind', 'passes', 'srcA', 'srcB', 'srcC', 'nop', 'wide_store')

    def __init__(self, text):
        self.text = text
        t = text.split(';')[0].strip()
        parts = t.split(None, 1)
        self.op = parts[0]
        rest = parts[1] if len(parts) > 1 else ''
        ops = [o.strip() for o in rest.split(',')] if rest else []
        if ops:
            ops[-1] = ops[-1].split()[0] if ops[-1].split() else ops[-1]
            ops = [o.split()[0] if o.split() else o for o in ops]
        self.ops = ops
        self.rd = set()
        self.wr = set()
        self.passes = 0
        self.srcA = self.srcB = self.srcC = set()
        self.nop = 1
        self.wide_store = set()
        op = self.op
        mods = t
        if op == 's_nop':
            self.kind = 'nop'
            self.nop = int(ops[0], 0) + 1
        elif op.startswith('v_mfma'):
            self.kind = 'mfma'
            self.passes = 8 if '32x32x16' in op else 4
            self.wr = regs_of(ops[0])
            self.srcA, self.srcB, self.srcC = regs_of(ops[1]), regs_of(ops[2]), regs_of(ops[3])
            self.rd = self.srcA | self.srcB | self.srcC
        elif op.startswith('v_'):
            self.kind = 'trans' if op in TRANS else 'valu'
            if op.startswith('v_dot'):
                self.kind = 'dot'
            if op.startswith('v_permlane'):
                self.kind = 'permlane'
                self.wr = regs_of(ops[0]) | regs_of(ops[1])
                self.rd = set(self.wr)
            else:
                self.wr = regs_of(ops[0])
                n = 1
                if op.startswith(('v_add_co', 'v_sub_co', 'v_addc_co', 'v_subb_co')):
                    self.wr |= regs_of(ops[1])
                    n = 2
                for o in ops[n:]:
                    self.rd |= regs_of(o)
                if op.startswith(('v_fmac', 'v_dot2c')) or 'UNUSED_PRESERVE' in mods:
                    self.rd |= self.wr
                if op.startswith('v_cmpx'):
                    self.wr |= {('exec', 0)}
                if op.startswith(('v_readfirstlane', 'v_readlane')):
                    self.kind = 'readlane'
        elif op.startswith('buffer_') or op.startswith('global_'):
            self.kind = 'vmem'
            if op in ('buffer_wbl2', 'buffer_inv'):
                pass
            elif re.search(r'\blds\b', mods) or 'load_lds' in op:
                for o in ops:
                    self.rd |= regs_of(o)
                self.rd |= {('m0', 0)}
                self.kind = 'vmem_lds'
            elif 'load' in op:
                self.wr = regs_of(ops[0])
                for o in ops[1:]:
                    self.rd |= regs_of(o)
            else:
                for o in ops:
                    self.rd |= regs_of(o)
                if 'atomic' in op and re.search(r'\bsc0\b', mods):
                    self.wr = regs_of(ops[0])
                if 'x4' in op or 'x3' in op:
                    self.wide_store = regs_of(ops[0]) if op.startswith('buffer_') else regs_of(ops[1])
        elif op.startswith('ds_'):
            self.kind = 'ds'
            if 'read' in op or 'permute' in op or 'swizzle' in op:
                self.wr = regs_of(ops[0])
                for o in ops[1:]:
                    self.rd |= regs_of(o)
            else:
                for o in ops:
                    self.rd |= regs_of(o)
        elif op.startswith('s_'):
            self.kind = 'salu'
            if op.startswith(('s_cmp', 's_cbranch', 's_branch', 's_waitcnt', 's_barrier', 's_endpgm', 's_setprio', 's_sleep', 's_bitcmp')):
                for o in ops:
                    self.rd |= regs_of(o)
            else:
                if ops:
                    self.wr = regs_of(ops[0])
                for o in ops[1:]:
                    self.rd |= regs_of(o)
                if 'saveexec' in op:
                    self.wr |= {('exec', 0)}
        else:
            raise ValueError('unknown instr ' + text)


VALU_KINDS = ('valu', 'trans', 'dot', 'permlane', 'readlane')


def vg(s):
    return {r for r in s if r[0] in ('v', 'a')}


def sg(s):
    return {r for r in s if r[0] in ('s', 'vcc')}


def need(p, c):
    n = 0
    pv = p.kind in VALU_KINDS
    cv = c.kind in VALU_KINDS
    if p.kind == 'mfma':
        big = p.passes == 8
        D = p.wr
        if c.kind == 'mfma':
            if D & (c.srcA | c.srcB):
                n = max(n, 12 if big else 8)
            if D & c.srcC:
                if not (c.srcC == D and c.passes == p.passes):
                    n = max(n, 10 if big else 6)
            elif D & c.wr:
                n = max(n, 10 if big else 6)
        else:
            if D & (c.rd | c.wr):
                n = max(n, 12 if big else 8)
        if cv and (p.srcC & c.wr):
            n = max(n, 7 if big else 3)
    if pv:
        w = vg(p.wr)
        if c.kind == 'mfma' and (w & c.rd):
            n = max(n, 2)
        if c.kind == 'permlane' and (w & c.rd):
            n = max(n, 2)
        if c.kind == 'readlane' and (w & c.rd):
            n = max(n, 1)
        if p.kind == 'trans' and cv and c.kind != 'trans' and (w & c.rd):
            n = max(n, 1)
        if p.kind == 'trans' and c.kind in ('vmem', 'ds', 'vmem_lds', 'mfma') and (w & c.rd):
            n = max(n, 1)
        if p.kind == 'dot' and (w & (c.rd | c.wr)):
            if not (c.op == p.op and not (w & (regs_of(c.ops[1]) | regs_of(c.ops[2])))):
                n = max(n, 3)
        if 'sdwa' in p.op and cv and (w & c.rd):
            n = max(n, 1)
        ws = sg(p.wr)
        if ws:
            if c.kind in ('vmem', 'vmem_lds') and (ws & c.rd):
                n = max(n, 5)
            if cv and (ws & c.rd):
                n = max(n, 4 if c.op.startswith(('v_readlane', 'v_writelane')) else 2)
        if ('exec', 0) in p.wr:
            if c.kind == 'mfma' or c.kind == 'permlane' or c.kind == 'readlane':
                n = max(n, 4)
    if p.kind == 'salu' and ('m0', 0) in p.wr and c.kind == 'vmem_lds':
        n = max(n, 1)
    if p.wide_store and (p.wide_store & c.wr):
        n = max(n, 2 if cv else 1)
    return n


class Asm:
    def __init__(self):
        self.lines = []
        self.vm = []
        self.lg = []

    def raw(self, t):
        self.lines.append(t)

    def label(self, l):
        self.lines.append(l + ':')

    def e(self, t):
        for l in t.strip().split('\n'):
            l = l.strip()
            if l:
                self.lines.append('    ' + l)

    def vmem(self, t, tag=None):
        self.e(t)
        self.vm.append(tag)

    def lds(self, t, tag=None):
        self.e(t)
        self.lg.append(tag)

    def _cnt(self, q, tags):
        if not isinstance(tags, (list, tuple, set)):
            tags = [tags]
        last = -1
        for i, t in enumerate(q):
            if t in tags:
                last = i
        return None if last < 0 else len(q) - 1 - last

    def wait(self, vm=None, lg=None):
        parts = []
        if vm is not None:
            n = self._cnt(self.vm, vm)
            if n is not None:
                assert n <= 63, n
                parts.append(f'vmcnt({n})')
                self.vm = self.vm[len(self.vm) - n:] if n else []
        if lg is not None:
            n = self._cnt(self.lg, lg)
            if n is not None:
                assert n <= 15, n
                parts.append(f'lgkmcnt({n})')
                self.lg = self.lg[len(self.lg) - n:] if n else []
        if parts:
            self.e('s_waitcnt ' + ' '.join(parts))

    def wait_all(self, vm=False, lg=False):
        parts = []
        if vm:
            parts.append('vmcnt(0)')
            self.vm = []
        if lg:
            parts.append('lgkmcnt(0)')
            self.lg = []
        self.e('s_waitcnt ' + ' '.join(parts))

    def text(self):
        return '\n'.join(self.lines) + '\n'


def check_hazards(lines, name=''):
    ins = []
    labels = {}
    for l in lines:
        s = l.split(';')[0].strip()
        if not s or s.startswith('.'):
            continue
        if s.endswith(':'):
            labels[s[:-1]] = len(ins)
            continue
        ins.append(Ins(s))
    n = len(ins)
    problems = []

    def succ(i):
        x = ins[i]
        if x.op == 's_endpgm':
            return []
        if x.op == 's_branch':
            return [labels[x.ops[0]]]
        r = [i + 1] if i + 1 < n else []
        if x.op.startswith('s_cbranch'):
            r.append(labels[x.ops[0]])
        return r

    for i, p in enumerate(ins):
        if not (p.wr or p.srcC or p.wide_store):
            continue
        if p.kind not in VALU_KINDS and p.kind != 'mfma' and not p.wide_store and ('m0', 0) not in p.wr:
            continue
        stack = [(j, 0) for j in succ(i)]
        seen = {}
        while stack:
            j, d = stack.pop()
            if j >= n or d >= 13:
                continue
            if j in seen and seen[j] <= d:
                continue
            seen[j] = d
            c = ins[j]
            k = need(p, c)
            if k > d:
                problems.append(f'{name}: need {k} have {d}: [{i}] {p.text}  ->  [{j}] {c.text}')
            for s_ in succ(j):
                stack.append((s_, d + c.nop))
    return problems
```

```python
import sys, struct, math
from asmlib import Asm, check_hazards

NAME = "interleave_layers__softmax_full_mha__dense_activation_squared_relu__prompt"
S, D, H, DH, F = 2048, 448, 16, 28, 1792
KB = 1024


def f2u(x):
    return struct.unpack('<I', struct.pack('<f', x))[0]


_off = 0


def alloc(n):
    global _off
    o = _off
    _off = (_off + n + 4095) // 4096 * 4096
    return o


WQKV_P = alloc(16 * 29 * 3 * KB + KB)
WO_P = alloc(14 * 32 * KB)
W1_P = alloc(14 * 29 * 4 * KB)
W2_P = alloc(14 * 112 * KB)
XA = alloc(64 * 28 * KB)
XB = alloc(64 * 28 * KB)
STA = alloc(64 * 14 * 256)
STB = alloc(64 * 14 * 256)
QB = alloc(16 * 64 * 2 * KB)
KBUF = alloc(16 * 64 * 2 * KB)
VB = alloc(16 * 64 * 2 * KB)
OB = alloc(64 * 32 * KB)
HB = alloc(64 * 112 * KB)
WS_SIZE = _off + 64 * KB

MF = "v_mfma_f32_32x32x16_bf16"


def vr(b, n=4):
    return f"v[{b}:{b + n - 1}]"


class Kernel:
    def __init__(self, name, nwg, lds, nvgpr, nsgpr=64):
        self.name, self.nwg, self.ldsb, self.nvgpr, self.nsgpr = name, nwg, lds, nvgpr, nsgpr
        self.a = Asm()
        a = self.a
        a.raw(f".globl {name}")
        a.raw(".p2align 8")
        a.raw(f".type {name},@function")
        a.label(name)
        a.e(f"s_cmp_ge_u32 s2, {nwg}")
        a.e(f"s_cbranch_scc1 L_{name}_end")

    def finish(self):
        a = self.a
        a.label(f"L_{self.name}_end")
        a.e("s_endpgm")
        probs = check_hazards(a.lines, self.name)
        for p in probs:
            print("HAZARD", p, file=sys.stderr)
        assert not probs
        nv = (self.nvgpr + 3) // 4 * 4
        self.kd = f""".p2align 6
.amdhsa_kernel {self.name}
  .amdhsa_next_free_vgpr {self.nvgpr}
  .amdhsa_next_free_sgpr {self.nsgpr}
  .amdhsa_accum_offset {nv}
  .amdhsa_group_segment_fixed_size 0
  .amdhsa_kernarg_size 88
  .amdhsa_user_sgpr_count 2
  .amdhsa_user_sgpr_kernarg_segment_ptr 1
  .amdhsa_system_sgpr_workgroup_id_x 1
.end_amdhsa_kernel
"""
        return self

    def launch(self):
        return f"; @launch kernel={self.name} grid=({self.nwg},1,1) block=(256,1,1) lds={self.ldsb}"


def ws_prologue(a, vL16=1, vT=2):
    a.e(f"""
    s_load_dwordx2 s[4:5], s[0:1], 80
    v_lshrrev_b32 v{vT}, 6, v0
    v_and_b32 v0, 63, v0
    s_mov_b32 s6, {WS_SIZE}
    v_readfirstlane_b32 s8, v{vT}
    s_mov_b32 s7, 0x20000
    v_lshlrev_b32 v{vL16}, 4, v0
    """)


def gen_prep():
    k = Kernel("prep_kernel", 238, 4096, 96)
    a = k.a
    ws_prologue(a)
    a.e("""
    s_load_dwordx4 s[20:23], s[0:1], 0     ; x, wqkv
    s_load_dwordx2 s[24:25], s[0:1], 16    ; wo
    s_load_dwordx4 s[28:31], s[0:1], 32    ; w1, b1
    s_load_dwordx2 s[32:33], s[0:1], 48    ; w2
    v_and_b32 v3, 31, v0                   ; n / row
    v_lshrrev_b32 v4, 5, v0                ; hi
    s_mov_b32 s15, 0x20000
    s_mov_b32 s19, 0x20000
    s_waitcnt lgkmcnt(0)
    s_mov_b32 s16, s30                     ; b1 SRD s[16:19]
    s_mov_b32 s17, s31
    s_mov_b32 s18, 3584
    s_cmp_ge_u32 s2, 174
    s_cbranch_scc1 L_prep_x
    """)
    a.e("""
    s_cmp_ge_u32 s2, 48
    s_cbranch_scc1 L_prep_notqkv
    """)
    a.e(f"""
    s_mov_b32 s12, s22
    s_mov_b32 s13, s23
    s_mov_b32 s14, {448 * 1344 * 2}
    s_mov_b32 s34, 2688
    s_lshr_b32 s44, s2, 4
    s_and_b32 s45, s2, 15
    s_mul_i32 s35, s44, 896
    s_mul_i32 s46, s45, 56
    s_add_u32 s35, s35, s46
    s_mov_b32 s36, 28
    s_mul_i32 s37, s8, 112
    s_mul_i32 s38, s45, {87 * KB}
    s_lshl_b32 s46, s44, 10
    s_add_u32 s38, s38, s46
    s_add_u32 s38, s38, {WQKV_P}
    s_add_u32 s41, s38, {28 * 3 * KB}
    s_mul_i32 s46, s8, {7 * 3 * KB}
    s_add_u32 s38, s38, s46
    s_mov_b32 s39, {3 * KB}
    s_mov_b32 s40, 1
    s_mov_b32 s42, 0
    s_cmp_eq_u32 s44, 0
    s_cbranch_scc1 L_prep_go
    s_add_u32 s42, s44, 1
    s_branch L_prep_go
    """)
    a.label("L_prep_notqkv")
    a.e("""
    s_cmp_ge_u32 s2, 104
    s_cbranch_scc1 L_prep_notw1
    """)
    a.e(f"""
    s_mov_b32 s12, s28
    s_mov_b32 s13, s29
    s_mov_b32 s14, {448 * 1792 * 2}
    s_mov_b32 s34, 3584
    s_sub_u32 s44, s2, 48
    s_lshl_b32 s35, s44, 6
    s_mov_b32 s43, s35
    s_mov_b32 s36, 32
    s_mul_i32 s37, s8, 112
    s_lshr_b32 s45, s44, 2
    s_mul_i32 s38, s45, {116 * KB}
    s_and_b32 s45, s44, 3
    s_lshl_b32 s45, s45, 10
    s_add_u32 s38, s38, s45
    s_add_u32 s38, s38, {W1_P}
    s_add_u32 s41, s38, {28 * 4 * KB}
    s_mul_i32 s46, s8, {7 * 4 * KB}
    s_add_u32 s38, s38, s46
    s_mov_b32 s39, {4 * KB}
    s_mov_b32 s40, 1
    s_mov_b32 s42, 1
    s_branch L_prep_go
    """)
    a.label("L_prep_notw1")
    a.e("""
    s_cmp_ge_u32 s2, 160
    s_cbranch_scc1 L_prep_wo
    """)
    a.e(f"""
    s_mov_b32 s12, s32
    s_mov_b32 s13, s33
    s_mov_b32 s14, {1792 * 448 * 2}
    s_mov_b32 s34, 896
    s_sub_u32 s44, s2, 104
    s_lshr_b32 s45, s44, 2
    s_and_b32 s44, s44, 3
    s_lshl_b32 s35, s45, 6
    s_mov_b32 s36, 32
    s_mul_i32 s46, s44, 28
    s_mul_i32 s47, s8, 7
    s_add_u32 s46, s46, s47
    s_lshl_b32 s37, s46, 4
    s_mul_i32 s38, s45, 112
    s_add_u32 s38, s38, s46
    s_lshl_b32 s38, s38, 10
    s_add_u32 s38, s38, {W2_P}
    s_mov_b32 s39, {KB}
    s_mov_b32 s40, 0
    s_mov_b32 s41, 0
    s_mov_b32 s42, 0
    s_branch L_prep_go
    """)
    a.label("L_prep_wo")
    a.e(f"""
    s_mov_b32 s12, s24
    s_mov_b32 s13, s25
    s_mov_b32 s14, {448 * 448 * 2}
    s_mov_b32 s34, 896
    s_sub_u32 s45, s2, 160
    s_lshl_b32 s35, s45, 6
    s_mov_b32 s36, 32
    s_mul_i32 s37, s8, 112
    s_lshl_b32 s38, s45, 5
    s_lshl_b32 s46, s8, 3
    s_add_u32 s38, s38, s46
    s_lshl_b32 s38, s38, 10
    s_add_u32 s38, s38, {WO_P}
    s_mov_b32 s39, {KB}
    s_mov_b32 s40, 2
    s_mov_b32 s41, 0
    s_mov_b32 s42, 0
    """)
    a.label("L_prep_go")
    for j, r in enumerate([0, 1, 2, 3, 8, 9, 10, 11]):
        a.e(f"s_mul_i32 s{48 + j}, s34, {r}")
    a.e("""
    v_lshlrev_b32 v5, 2, v4
    v_add_u32 v5, s37, v5
    v_mul_lo_u32 v5, v5, s34
    v_lshl_add_u32 v5, v3, 1, v5
    v_add_u32 v5, s35, v5
    v_mov_b32 v6, 0x40000000
    v_cmp_gt_u32 vcc, s36, v3
    s_lshl_b32 s56, s34, 4                 ; 16 rows
    s_mul_i32 s57, s34, 12                 ; 12 rows (wo: odd kstep -> next head)
    v_cndmask_b32 v5, v6, v5, vcc
    v_cmp_eq_u32 vcc, 1, v4
    s_cmp_eq_u32 s40, 2
    s_cbranch_scc1 L_prep_wo_loop
    """)
    for i in range(7):
        for j in range(8):
            a.vmem(f"buffer_load_ushort v{16 + 8 * i + j}, v5, s[12:15], s{48 + j} offen", ('w', i))
        if i < 6:
            a.e("v_add_u32 v5, s56, v5")
    a.e("v_mov_b32 v8, 0x3f803f80\nv_mov_b32 v9, 0x3f803f80\nv_mov_b32 v10, 0x3f803f80\nv_mov_b32 v11, 0x3f803f80")
    for i in range(7):
        a.wait(vm=[('w', i)])
        b = 16 + 8 * i
        for j in range(4):
            a.e(f"v_lshl_or_b32 v{b + j}, v{b + 2 * j + 1}, 16, v{b + 2 * j}")
        a.vmem(f"buffer_store_dwordx4 {vr(b)}, v1, s[4:7], s38 offen", 'st')
        a.e("s_add_u32 s38, s38, s39")
        a.e(f"{MF} v[80:95], v[8:11], {vr(b)}, " + ("0" if i == 0 else "v[80:95]"))
    a.e("""
    s_cmp_eq_u32 s40, 0
    s_cbranch_scc1 L_prep_kernel_end
    """)
    a.e("""
    v_lshlrev_b32 v12, 2, v0
    s_lshl_b32 s44, s8, 8
    v_add_u32 v13, s44, v12
    v_lshlrev_b32 v14, 1, v3
    v_add_u32 v14, s43, v14
    s_nop 7
    s_nop 1
    ds_write_b32 v13, v80
    s_waitcnt lgkmcnt(0)
    s_barrier
    s_cmp_lg_u32 s8, 0
    s_cbranch_scc1 L_prep_kernel_end
    ds_read_b32 v16, v12
    ds_read_b32 v17, v12 offset:256
    ds_read_b32 v18, v12 offset:512
    ds_read_b32 v19, v12 offset:768
    v_mov_b32 v22, 0
    s_cmp_lg_u32 s42, 1
    s_cbranch_scc1 L_prep_nob1
    buffer_load_ushort v22, v14, s[16:19], 0 offen
    s_waitcnt vmcnt(0)
    v_lshl_or_b32 v22, v22, 16, v22
    s_branch L_prep_biasdone
    """)
    a.label("L_prep_nob1")
    a.e("""
    s_cmp_eq_u32 s42, 0
    s_cbranch_scc1 L_prep_biasdone
    s_mov_b32 s44, 31
    s_cmp_eq_u32 s42, 2
    s_cselect_b32 s44, 31, 29
    v_mov_b32 v23, 0x3f803f80
    v_cmp_le_u32 s[46:47], 28, v3
    v_cmp_gt_u32 s[58:59], s44, v3
    s_and_b64 s[46:47], s[46:47], s[58:59]
    s_nop 1
    v_cndmask_b32 v22, v22, v23, s[46:47]
    """)
    a.label("L_prep_biasdone")
    a.e("""
    s_waitcnt lgkmcnt(0)
    v_add_f32 v16, v16, v17
    v_add_f32 v18, v18, v19
    v_add_f32 v16, v16, v18
    v_cvt_pk_bf16_f32 v17, v16, v16
    v_lshlrev_b32 v17, 16, v17
    v_sub_f32 v17, v16, v17
    v_cvt_pk_bf16_f32 v20, v16, v17
    v_mov_b32 v23, 0
    v_cmp_eq_u32 vcc, 1, v4
    s_nop 1
    v_cndmask_b32 v20, v20, v23, vcc
    v_cndmask_b32 v22, v22, v23, vcc
    v_mov_b32 v21, v20
    buffer_store_dwordx4 v[20:23], v1, s[4:7], s41 offen
    s_branch L_prep_kernel_end
    """)
    a.vm = []
    a.label("L_prep_wo_loop")
    for i in range(8):
        if i & 1:
            a.e("v_cndmask_b32 v7, v5, v6, vcc")
        for j in range(8):
            va = "v7" if ((i & 1) and j >= 4) else "v5"
            a.vmem(f"buffer_load_ushort v{16 + 8 * i + j}, {va}, s[12:15], s{48 + j} offen", ('w', i))
            if i == 7 and j == 0:
                a.wait(vm=[('w', 0)])
        if i < 7:
            a.e(f"v_add_u32 v5, {'s57' if (i & 1) else 's56'}, v5")
    for i in range(8):
        a.wait(vm=[('w', i)])
        b = 16 + 8 * i
        for j in range(4):
            a.e(f"v_lshl_or_b32 v{b + j}, v{b + 2 * j + 1}, 16, v{b + 2 * j}")
        a.vmem(f"buffer_store_dwordx4 {vr(b)}, v1, s[4:7], s38 offen", 'st')
        a.e("s_add_u32 s38, s38, s39")
    a.e("s_branch L_prep_kernel_end")
    a.vm = []
    a.label("L_prep_x")
    a.e(f"""
    s_mov_b32 s12, s20
    s_mov_b32 s13, s21
    s_mov_b32 s14, {S * D * 2}
    s_sub_u32 s44, s2, 174
    s_mul_i32 s45, s44, {32 * 896}
    s_mul_i32 s46, s8, {7 * 32}
    s_add_u32 s45, s45, s46
    v_mul_u32_u24 v5, 896, v3
    v_lshl_add_u32 v5, v4, 3, v5
    s_mul_i32 s38, s44, 28
    s_mul_i32 s46, s8, 7
    s_add_u32 s38, s38, s46
    s_lshl_b32 s38, s38, 10
    s_add_u32 s38, s38, {XA}
    v_mov_b32 v8, 0x3f803f80
    v_mov_b32 v10, 0
    v_mov_b32 v11, 0
    """)
    for i in range(7):
        b = 16 + 4 * i
        a.vmem(f"buffer_load_dwordx2 v[{b}:{b + 1}], v5, s[12:15], s45 offen offset:{32 * i}", ('x', i))
        a.vmem(f"buffer_load_dwordx2 v[{b + 2}:{b + 3}], v5, s[12:15], s45 offen offset:{32 * i + 16}", ('x', i))
    for i in range(7):
        b = 16 + 4 * i
        a.wait(vm=[('x', i)])
        a.vmem(f"buffer_store_dwordx4 {vr(b)}, v1, s[4:7], s38 offen", 'st')
        a.e("s_add_u32 s38, s38, 1024")
        for j in range(4):
            a.e(f"v_dot2_f32_bf16 v10, v{b + j}, v8, v10")
            a.e(f"v_dot2_f32_bf16 v11, v{b + j}, v{b + j}, v11")
    a.e(f"""
    s_mul_i32 s38, s44, {14 * 256}
    s_lshl_b32 s46, s8, 8
    s_add_u32 s38, s38, s46
    s_add_u32 s38, s38, {STA}
    v_lshlrev_b32 v12, 2, v0
    v_mov_b32 v13, 0
    v_permlane32_swap_b32 v10, v11
    v_add_f32 v10, v10, v11
    buffer_store_dword v10, v12, s[4:7], s38 offen
    buffer_store_dword v13, v12, s[4:7], s38 offen offset:1024
    buffer_store_dword v13, v12, s[4:7], s38 offen offset:2048
    s_cmp_ge_u32 s8, 2
    s_cbranch_scc1 L_prep_kernel_end
    buffer_store_dword v13, v12, s[4:7], s38 offen offset:3072
    """)
    a.label("L_prep_kernel_end_")
    return finish_alias(k)


def finish_alias(k):
    return k.finish()


def gen_gemm_rows(name, mode):
    NT = 3 if mode == 'qkv' else 4
    nwg = 256 if mode == 'qkv' else 224
    wbytes = 29 * NT * KB
    ldsb = (88 * KB + 512) if mode == 'qkv' else 116 * KB
    XIN, STIN = (XA, STA) if mode == 'qkv' else (XB, STB)
    k = Kernel(name, nwg, ldsb, 256)
    a = k.a
    ws_prologue(a)
    vL16, vL16b = 1, 2
    vST = 3
    X0 = 16
    ACC = 128
    AF = 192
    XE = 240
    vR = 244
    vQ = 246
    T0 = 248
    STR = 128
    a.e("s_and_b32 s13, s2, 7\ns_lshr_b32 s14, s2, 3")
    if mode == 'qkv':
        a.e(f"""
        s_and_b32 s15, s14, 1
        s_lshl_b32 s13, s13, 1
        s_add_u32 s15, s15, s13            ; head
        s_lshr_b32 s16, s14, 1             ; rb
        s_mul_i32 s11, s15, {wbytes}
        s_add_u32 s11, s11, {WQKV_P}
        """)
    else:
        a.e(f"""
        s_cmp_ge_u32 s14, 14
        s_cselect_b32 s16, 1, 0
        s_cselect_b32 s17, 14, 0
        s_sub_u32 s15, s14, s17            ; cg
        s_lshl_b32 s13, s13, 1
        s_add_u32 s16, s16, s13            ; rb
        s_mul_i32 s11, s15, {wbytes}
        s_add_u32 s11, s11, {W1_P}
        """)
    a.e(f"""
    s_lshl_b32 s9, s16, 2
    s_add_u32 s9, s9, s8                   ; rt
    s_mul_i32 s10, s9, {28 * KB}
    s_add_u32 s10, s10, {XIN}              ; X soffset
    s_lshl_b32 s18, s8, 10
    s_add_u32 s18, s18, {28 * NT * KB}
    s_add_u32 s19, s11, s18
    s_mul_i32 s12, s8, {NT * KB}
    s_add_u32 s11, s11, s12
    s_mul_i32 s20, s9, {14 * 256}
    s_add_u32 s20, s20, {STIN}
    s_mov_b32 m0, s12
    s_waitcnt lgkmcnt(0)
    """)

    def issue_items(c):
        it = []
        if c < 7:
            for t in range(NT):
                it.append(lambda t=t: a.vmem(f"buffer_load_dwordx4 v{vL16}, s[4:7], s11 offen offset:{t * KB} lds", ('c', c)))
            for i in range(4):
                it.append(lambda i=i: a.vmem(f"buffer_load_dwordx4 {vr(X0 + 4 * (4 * c + i))}, v{vL16}, s[4:7], s10 offen offset:{i * KB}", ('c', c)))
            if c < 6:
                it.append(lambda: a.e(f"s_add_u32 s11, s11, {4 * NT * KB}\ns_add_u32 s12, s12, {4 * NT * KB}\ns_add_u32 s10, s10, {4 * KB}\ns_mov_b32 m0, s12"))
            else:
                it.append(lambda: a.e("s_mov_b32 m0, s18\ns_nop 0"))
                it.append(lambda: a.vmem(f"buffer_load_dwordx4 v{vL16}, s[4:7], s19 offen lds", ('c', 7)))
        return it

    PF = 3
    for c in range(PF):
        for f in issue_items(c):
            f()
        if c < PF - 1:
            a.e("s_nop 0")
    a.e(f"v_lshlrev_b32 v{T0}, 2, v0")
    a.e(f"v_add_u32 v{vL16b}, 0x10000, v{vL16}")
    streg = list(range(3, 16)) + [255]
    for i in range(14):
        a.vmem(f"buffer_load_dword v{streg[i]}, v{T0}, s[4:7], s20 offen offset:{i * 256}", 'st')

    def stats_items():
        it = []
        it.append(lambda: a.wait(vm='st'))
        E = lambda s: it.append(lambda s=s: a.e(s))
        for i in range(7):
            E(f"v_add_f32 v{streg[2 * i]}, v{streg[2 * i]}, v{streg[2 * i + 1]}")
        E("v_add_f32 v3, v3, v5")
        E("v_add_f32 v7, v7, v9")
        E("v_add_f32 v11, v11, v13")
        E("v_add_f32 v3, v3, v7")
        E("v_add_f32 v11, v11, v15")
        E("v_add_f32 v3, v3, v11")
        E(f"v_mul_f32 v3, {hex(f2u(1.0 / D))}, v3")
        E("v_mov_b32 v4, v3\ns_nop 1")
        E("v_permlane32_swap_b32 v3, v4")
        E("v_fma_f32 v5, -v3, v3, v4")
        E("v_max_f32 v5, 0, v5")
        E(f"v_add_f32 v5, {hex(f2u(1e-5))}, v5")
        E(f"v_rsq_f32 v{vR}, v5")
        E(f"v_cvt_pk_bf16_f32 v{XE}, -v3, -v3")
        E(f"v_mul_f32 v5, v5, v{vR}")
        E(f"v_lshlrev_b32 v6, 16, v{XE}")
        E("v_sub_f32 v6, -v3, v6" if False else "v_add_f32 v6, v3, v6")
        E(f"v_cvt_pk_bf16_f32 v{XE + 1}, -v6, -v6")
        E("v_cvt_pk_bf16_f32 v7, v5, v5")
        E("v_lshlrev_b32 v7, 16, v7")
        E("v_sub_f32 v7, v5, v7")
        E(f"v_cvt_pk_bf16_f32 v{XE + 2}, v5, v7")
        E(f"v_mov_b32 v{XE + 3}, 0")
        if mode == 'qkv':
            c = (DH ** -0.5) * math.log2(math.e)
            E(f"v_mul_f32 v{vQ}, {hex(f2u(c))}, v{vR}")
            E("v_and_b32 v8, 31, v0")
            E(f"s_lshl_b32 s21, s8, 7\ns_add_u32 s21, s21, {88 * KB}")
            E("v_lshl_add_u32 v8, v8, 2, s21")
            it.append(lambda: a.lds(f"ds_write_b32 v8, v{vR}", 'rb'))
            E("v_lshrrev_b32 v9, 5, v0")
            E("v_lshl_add_u32 v9, v9, 4, s21")
        return it

    fill = []

    def pop_fill(n=1):
        for _ in range(n):
            if fill:
                fill.pop(0)()

    def afrag(ks, t):
        return AF + ((ks % 3) * NT + t) * 4

    def rd(ks, t):
        off = (ks * NT + t) * KB
        base = vL16 if off < 65536 else vL16b
        a.lds(f"ds_read_b128 {vr(afrag(ks, t))}, v{base} offset:{off & 0xffff}", ('a', ks, t))

    def enter_chunk(c):
        a.wait(vm=[('c', c)])
        a.e("s_barrier")
        if c + PF <= 6:
            fill.extend(issue_items(c + PF))
        if c == 4:
            fill.extend(stats_items())

    enter_chunk(0)
    for ks in (0, 1):
        for t in range(NT):
            rd(ks, t)
    for ks in range(29):
        nks = ks + 2
        if nks <= 28 and nks % 4 == 0:
            if nks // 4 == 7:
                while fill:
                    pop_fill()
            enter_chunk(nks // 4)
        if ks == 28:
            while fill:
                pop_fill()
            a.e("s_nop 1")
        for t in range(NT):
            a.wait(lg=[('a', ks, t)])
            xb = X0 + 4 * ks if ks < 28 else XE
            A, B = vr(afrag(ks, t)), vr(xb)
            if mode == 'qkv' and t == 2:
                A, B = B, A
            acc = vr(ACC + 16 * t, 16)
            a.e(f"{MF} {acc}, {A}, {B}, " + ("0" if ks == 0 else acc))
            if nks <= 28:
                rd(nks, t)
            pop_fill(2)
    P = AF
    if mode == 'qkv':
        for g in range(4):
            a.lds(f"ds_read_b128 {vr(X0 + 4 * g)}, v9 offset:{32 * g}", 'rv')
        a.e(f"""
        s_lshl_b32 s21, s15, 6
        s_add_u32 s21, s21, s9
        s_lshl_b32 s21, s21, 11
        s_add_u32 s22, s21, {QB}
        s_add_u32 s23, s21, {KBUF}
        s_add_u32 s24, s21, {VB}
        s_nop 2
        """)
        for t in range(3):
            if t == 2:
                a.wait(lg='rv')
            for i in range(8):
                r = ACC + 16 * t + 2 * i
                if t < 2:
                    s = vQ if t == 0 else vR
                    a.e(f"v_pk_mul_f32 v[{r}:{r + 1}], v[{r}:{r + 1}], v[{s}:{s + 1}] op_sel_hi:[1,0]")
                else:
                    a.e(f"v_pk_mul_f32 v[{r}:{r + 1}], v[{r}:{r + 1}], v[{X0 + 2 * i}:{X0 + 2 * i + 1}]")
            for i in range(8):
                r = ACC + 16 * t + 2 * i
                a.e(f"v_cvt_pk_bf16_f32 v{P + 8 * t + i}, v{r}, v{r + 1}")
            a.vmem(f"buffer_store_dwordx4 {vr(P + 8 * t)}, v{vL16}, s[4:7], s{22 + t} offen")
            a.vmem(f"buffer_store_dwordx4 {vr(P + 8 * t + 4)}, v{vL16}, s[4:7], s{22 + t} offen offset:1024")
    else:
        a.e(f"""
        s_mul_i32 s21, s9, 112
        s_lshl_b32 s22, s15, 3
        s_add_u32 s21, s21, s22
        s_lshl_b32 s21, s21, 10
        s_add_u32 s21, s21, {HB}
        s_add_u32 s22, s21, 4096
        s_nop 3
        """)
        for t in range(4):
            for i in range(16):
                r = ACC + 16 * t + i
                a.e(f"v_max_f32 v{r}, 0, v{r}")
            for i in range(8):
                r = ACC + 16 * t + 2 * i
                a.e(f"v_pk_mul_f32 v[{r}:{r + 1}], v[{r}:{r + 1}], v[{vR}:{vR + 1}] op_sel_hi:[1,0]")
            for i in range(8):
                r = ACC + 16 * t + 2 * i
                a.e(f"v_pk_mul_f32 v[{r}:{r + 1}], v[{r}:{r + 1}], v[{r}:{r + 1}]")
            for i in range(8):
                r = ACC + 16 * t + 2 * i
                a.e(f"v_cvt_pk_bf16_f32 v{P + 8 * t + i}, v{r}, v{r + 1}")
            so = 21 + (t >> 1)
            a.vmem(f"buffer_store_dwordx4 {vr(P + 8 * t)}, v{vL16}, s[4:7], s{so} offen offset:{(t & 1) * 2048}")
            a.vmem(f"buffer_store_dwordx4 {vr(P + 8 * t + 4)}, v{vL16}, s[4:7], s{so} offen offset:{(t & 1) * 2048 + 1024}")
    return k.finish()


def gen_attn():
    k = Kernel("attn_kernel", 256, 96 * KB, 256)
    a = k.a
    ws_prologue(a)
    vL16 = 1
    Q, O, S0, E, P0, KV, M = 8, 40, 104, 136, 144, 160, 224
    T = 228

    def Sb(s): return S0 + 16 * (s & 1)
    def Pb(s): return P0 + 8 * (s & 1)
    def Kr(t): return KV + 16 * (t & 3)
    def Vr(t): return KV + 16 * (t & 3) + 8

    a.e(f"""
    s_and_b32 s13, s2, 7
    s_lshr_b32 s14, s2, 3
    s_and_b32 s15, s14, 1
    s_lshl_b32 s13, s13, 1
    s_add_u32 s15, s15, s13                ; head
    s_lshr_b32 s16, s14, 1                 ; qb
    s_lshl_b32 s17, s15, 17                ; head*64*2KB
    s_lshl_b32 s18, s8, 15
    s_add_u32 s18, s18, s17
    s_add_u32 s26, s18, {KBUF}
    s_add_u32 s27, s18, {VB}               ; V base
    s_lshl_b32 s19, s16, 13                ; qb*4*2KB
    s_add_u32 s19, s19, s17
    s_add_u32 s19, s19, {QB}
    """)
    for j in range(4):
        a.e(f"s_xor_b32 s{20 + j}, s8, {j ^ 3}\ns_lshl_b32 s{20 + j}, s{20 + j}, 11\ns_add_u32 s{20 + j}, s{20 + j}, s19")
    a.e("""
    s_mov_b32 s30, 0
    s_mov_b32 s39, 0x20000
    s_waitcnt lgkmcnt(0)
    s_mov_b32 s36, s4
    s_mov_b32 s37, s5
    """)
    for j in range(4):
        a.vmem(f"buffer_load_dwordx4 {vr(Q + 8 * j)}, v{vL16}, s[4:7], s{20 + j} offen", 'q')
        a.vmem(f"buffer_load_dwordx4 {vr(Q + 8 * j + 4)}, v{vL16}, s[4:7], s{20 + j} offen offset:1024", 'q')

    def loadK(t, sreg, off, tag):
        a.vmem(f"buffer_load_dwordx4 {vr(Kr(t))}, v{vL16}, s[36:39], s{sreg} offen offset:{off}", tag)
        a.vmem(f"buffer_load_dwordx4 {vr(Kr(t) + 4)}, v{vL16}, s[36:39], s{sreg} offen offset:{off + 1024}", tag)

    def loadV(t, sreg, off, tag):
        a.vmem(f"buffer_load_dwordx4 {vr(Vr(t))}, v{vL16}, s[36:39], s{sreg} offen offset:{off}", tag)
        a.vmem(f"buffer_load_dwordx4 {vr(Vr(t) + 4)}, v{vL16}, s[36:39], s{sreg} offen offset:{off + 1024}", tag)

    a.label("L_attn_restart")
    a.e(f"""
    s_mov_b32 s38, {WS_SIZE}
    s_mov_b32 s10, s26
    s_add_u32 s11, s26, 4096
    s_mov_b32 s12, s27
    s_add_u32 s13, s27, 4096
    """)
    for t in range(4):
        loadK(t, 10 + (t >> 1), (t & 1) * 2048, ('k', t))
        loadV(t, 12 + (t >> 1), (t & 1) * 2048, ('v', t))
    a.e("""
    s_add_u32 s10, s10, 8192
    s_add_u32 s11, s11, 8192
    s_add_u32 s12, s12, 8192
    s_add_u32 s13, s13, 8192
    s_mov_b32 s28, 4
    """)
    for i in range(64):
        a.e(f"v_mov_b32 v{O + i}, 0")
    a.e("s_waitcnt vmcnt(14)")
    a.e("s_cmp_lg_u32 s30, 0\ns_cbranch_scc1 L_attn_havemax")

    def smf(dst, t, j):
        a.e(f"{MF} {vr(dst, 16)}, {vr(Kr(t))}, {vr(Q + 8 * j)}, 0")
        a.e(f"{MF} {vr(dst, 16)}, {vr(Kr(t) + 4)}, {vr(Q + 8 * j + 4)}, {vr(dst, 16)}")

    def maxtree(src, dst):
        a.e(f"v_max3_f32 v{dst}, v{src}, v{src + 1}, v{src + 2}")
        for i in range(3, 15, 2):
            a.e(f"v_max3_f32 v{dst}, v{dst}, v{src + i}, v{src + i + 1}")
        a.e(f"v_max_f32 v{dst}, v{dst}, v{src + 15}")

    smf(Sb(0), 0, 0)
    smf(Sb(1), 0, 1)
    a.e("s_nop 7\ns_nop 1")
    maxtree(Sb(0), M + 0)
    smf(Sb(0), 0, 2)
    a.e("s_nop 0")
    maxtree(Sb(1), M + 1)
    smf(Sb(1), 0, 3)
    a.e("s_nop 1")
    maxtree(Sb(0), M + 2)
    a.e("s_nop 1")
    maxtree(Sb(1), M + 3)
    a.e("s_mov_b32 exec_lo, 0")
    for j in range(4):
        a.e(f"v_cvt_pk_bf16_f32 v{Q + 8 * j + 6}, -v{M + j}, 0")
    for j in range(4):
        a.e(f"v_lshlrev_b32 v{M + j}, 16, v{Q + 8 * j + 6}")
    a.e("s_mov_b32 exec_lo, -1")
    a.label("L_attn_havemax")
    a.e("s_nop 0")

    def step(s, do_pv=True, pre=None, post=None):
        t1, j1 = ((s + 1) >> 2) & 3, (s + 1) & 3
        tp, jp = ((s - 1) >> 2) & 3, (s - 1) & 3
        sb, pb = Sb(s), Pb(s)
        nb = Sb(s + 1)
        mf = [
            f"{MF} {vr(nb, 16)}, {vr(Kr(t1))}, {vr(Q + 8 * j1)}, 0",
            f"{MF} {vr(nb, 16)}, {vr(Kr(t1) + 4)}, {vr(Q + 8 * j1 + 4)}, {vr(nb, 16)}",
            f"{MF} {vr(O + 16 * jp, 16)}, {vr(Vr(tp))}, {vr(Pb(s - 1))}, {vr(O + 16 * jp, 16)}",
            f"{MF} {vr(O + 16 * jp, 16)}, {vr(Vr(tp) + 4)}, {vr(Pb(s - 1) + 4)}, {vr(O + 16 * jp, 16)}",
        ]
        if pre:
            a.e(pre)
        for g in range(4):
            if g < 2 or do_pv:
                a.e(mf[g])
            e = E + 4 * (g & 1)
            for i in range(4):
                a.e(f"v_exp_f32 v{e + i}, v{sb + 4 * g + i}")
                if i == 0 and g > 0:
                    pe = E + 4 * ((g - 1) & 1)
                    a.e(f"v_cvt_pk_bf16_f32 v{pb + 2 * (g - 1) + 1}, v{pe + 2}, v{pe + 3}")
                if i == 2:
                    a.e(f"v_cvt_pk_bf16_f32 v{pb + 2 * g}, v{e}, v{e + 1}")
        if post:
            post()
        else:
            a.e("s_nop 0")
        a.e(f"v_cvt_pk_bf16_f32 v{pb + 7}, v{E + 6}, v{E + 7}")

    smf(Sb(0), 0, 0)
    a.e("s_nop 7\ns_nop 2")
    step(0, do_pv=False)
    a.raw(".p2align 6")
    a.label("L_attn_loop")
    a.e("s_cmp_eq_u32 s28, 1\ns_cselect_b32 s38, 0, s38")
    for s in range(1, 17):
        if s == 16:
            a.e("s_sub_u32 s28, s28, 1\ns_cmp_eq_u32 s28, 0\ns_cbranch_scc1 L_attn_done")
        pre = None
        if (s & 3) == 3 or (s & 3) == 1:
            pre = "s_waitcnt vmcnt(12)"
        post = None
        if (s & 3) == 2:
            t = s >> 2
            post = lambda t=t: loadK(t, 10 + (t >> 1), (t & 1) * 2048, None)
        elif (s & 3) == 0:
            t = (s >> 2) - 1
            if s == 16:
                def post(t=t):
                    loadV(t, 12 + (t >> 1), (t & 1) * 2048, None)
                    a.e("s_add_u32 s10, s10, 8192\ns_add_u32 s11, s11, 8192\ns_add_u32 s12, s12, 8192\ns_add_u32 s13, s13, 8192")
            else:
                post = lambda t=t: loadV(t, 12 + (t >> 1), (t & 1) * 2048, None)
        step(s, pre=pre, post=post)
    a.e("s_branch L_attn_loop")
    a.label("L_attn_done")
    a.vm = []
    a.e("s_nop 0")
    a.e(f"{MF} {vr(O + 48, 16)}, {vr(Vr(3))}, {vr(Pb(15))}, {vr(O + 48, 16)}")
    a.e(f"{MF} {vr(O + 48, 16)}, {vr(Vr(3) + 4)}, {vr(Pb(15) + 4)}, {vr(O + 48, 16)}")
    a.e(f"""
    v_mov_b32 v{T}, {hex(f2u(2.0 ** 30))}
    s_nop 7
    s_nop 3
    v_cmp_nle_f32 s[40:41], v{O + 12}, v{T}
    v_cmp_nle_f32 s[42:43], v{O + 28}, v{T}
    v_cmp_nle_f32 s[44:45], v{O + 44}, v{T}
    v_cmp_nle_f32 s[46:47], v{O + 60}, v{T}
    s_or_b32 s41, s41, s43
    s_or_b32 s45, s45, s47
    s_or_b32 s41, s41, s45
    s_cmp_eq_u32 s41, 0
    s_cbranch_scc1 L_attn_merge
    s_cmp_lg_u32 s30, 0
    s_cbranch_scc1 L_attn_merge
    """)
    a.e(f"""
    s_mov_b32 s30, 1
    s_mov_b32 s38, {WS_SIZE}
    s_waitcnt vmcnt(0)
    s_mov_b32 exec_lo, 0
    """)
    for j in range(4):
        a.e(f"v_mov_b32 v{Q + 8 * j + 6}, 0")
    a.e("s_mov_b32 exec_lo, -1")
    for j in range(4):
        a.e(f"v_mov_b32 v{M + j}, 0xff800000")
    a.e("s_mov_b32 s10, s26\ns_mov_b32 s28, 16")
    a.label("L_attn_fb")
    loadK(0, 10, 0, None)
    a.e("s_waitcnt vmcnt(0)")
    for j in range(4):
        smf(Sb(0), 0, j)
        a.e("s_nop 7\ns_nop 3")
        for i in range(0, 16, 2):
            a.e(f"v_max3_f32 v{M + j}, v{M + j}, v{Sb(0) + i}, v{Sb(0) + i + 1}")
    a.e("s_add_u32 s10, s10, 2048\ns_sub_u32 s28, s28, 1\ns_cmp_lg_u32 s28, 0\ns_cbranch_scc1 L_attn_fb")
    for j in range(4):
        a.e(f"""
        v_mov_b32 v{T}, v{M + j}
        s_nop 1
        v_permlane32_swap_b32 v{M + j}, v{T}
        v_max_f32 v{M + j}, v{M + j}, v{T}
        s_mov_b32 exec_lo, 0
        v_sub_f32 v{M + j}, 0, v{M + j}
        v_cvt_pk_bf16_f32 v{T}, v{M + j}, v{M + j}
        v_lshlrev_b32 v{T}, 16, v{T}
        v_sub_f32 v{T + 1}, v{M + j}, v{T}
        v_cvt_pk_bf16_f32 v{Q + 8 * j + 6}, v{M + j}, v{T + 1}
        v_and_b32 v{T + 2}, 0xffff0000, v{Q + 8 * j + 6}
        v_sub_f32 v{T + 1}, v{T + 1}, v{T + 2}
        v_cvt_pk_bf16_f32 v{Q + 8 * j + 7}, v{T + 1}, 0
        v_lshlrev_b32 v{T + 1}, 16, v{Q + 8 * j + 7}
        v_add_f32 v{T + 2}, v{T + 2}, v{T + 1}
        v_add_f32 v{M + j}, v{T}, v{T + 2}
        s_mov_b32 exec_lo, -1
        """)
    a.e("s_branch L_attn_restart")
    a.vm = []
    a.label("L_attn_merge")
    MOFF = 48 * KB
    for j in range(3):
        a.e(f"""
        s_xor_b32 s40, s8, {j ^ 3}
        s_mul_i32 s41, s40, {12 * KB}
        s_add_u32 s41, s41, {j * 4 * KB}
        v_add_u32 v{T + j}, s41, v{vL16}
        """)
        for qd in range(4):
            a.e(f"ds_write_b128 v{T + j}, {vr(O + 16 * j + 4 * qd)} offset:{qd * KB}")
    a.e(f"v_and_b32 v{T + 4}, 31, v0\nv_lshlrev_b32 v{T + 4}, 2, v{T + 4}")
    a.e("s_mov_b32 exec_lo, 0")
    for j in range(4):
        a.e(f"""
        s_xor_b32 s40, s8, {j ^ 3}
        s_lshl_b32 s40, s40, 9
        s_add_u32 s40, s40, {MOFF + j * 128}
        v_add_u32 v{T + 5}, s40, v{T + 4}
        ds_write_b32 v{T + 5}, v{M + j}
        """)
    a.e(f"""
    s_mov_b32 exec_lo, -1
    s_mul_i32 s41, s8, {12 * KB}
    v_add_u32 v{T}, s41, v{vL16}
    s_lshl_b32 s40, s8, 9
    s_add_u32 s40, s40, {MOFF}
    v_add_u32 v{T + 5}, s40, v{T + 4}
    s_waitcnt lgkmcnt(0)
    s_barrier
    """)
    a.lg = []
    for j in range(4):
        a.lds(f"ds_read_b32 v{M + j}, v{T + 5} offset:{j * 128}", 'm')
    for j in range(3):
        for qd in range(4):
            if j == 2 and qd == 3:
                a.wait(lg='m')
            a.lds(f"ds_read_b128 {vr(O + 16 * j + 4 * qd)}, v{T} offset:{(j * 4 + qd) * KB}", ('o', j))
    a.e(f"""
    v_min3_f32 v{T + 1}, v{M}, v{M + 1}, v{M + 2}
    v_min_f32 v{T + 1}, v{T + 1}, v{M + 3}
    """)
    FR = 232
    for j in range(4):
        a.e(f"v_sub_f32 v{M + j}, v{T + 1}, v{M + j}")
    for j in range(4):
        a.e(f"v_exp_f32 v{FR + 2 * j}, v{M + j}")
    a.e("s_nop 0")
    OW = O + 48
    for i in range(8):
        r = OW + 2 * i
        a.e(f"v_pk_mul_f32 v[{r}:{r + 1}], v[{r}:{r + 1}], v[{FR + 6}:{FR + 7}] op_sel_hi:[1,0]")
    for j in range(3):
        a.wait(lg=[('o', j)])
        for i in range(8):
            r = OW + 2 * i
            s = O + 16 * j + 2 * i
            a.e(f"v_pk_fma_f32 v[{r}:{r + 1}], v[{s}:{s + 1}], v[{FR + 2 * j}:{FR + 2 * j + 1}], v[{r}:{r + 1}] op_sel_hi:[1,0,1]")
    a.e(f"""
    v_mov_b32 v{T}, v{OW + 12}
    v_mov_b32 v{T + 1}, v{OW + 12}
    s_lshl_b32 s40, s16, 2
    s_add_u32 s40, s40, s8
    v_permlane32_swap_b32 v{T}, v{T + 1}
    s_lshl_b32 s40, s40, 5
    v_rcp_f32 v{FR}, v{T + 1}
    s_lshl_b32 s41, s15, 1
    s_add_u32 s40, s40, s41
    s_lshl_b32 s40, s40, 10
    s_add_u32 s40, s40, {OB}
    """)
    for i in range(8):
        r = OW + 2 * i
        a.e(f"v_pk_mul_f32 v[{r}:{r + 1}], v[{r}:{r + 1}], v[{FR}:{FR + 1}] op_sel_hi:[1,0]")
    for i in range(8):
        r = OW + 2 * i
        a.e(f"v_cvt_pk_bf16_f32 v{P0 + i}, v{r}, v{r + 1}")
    a.e(f"""
    s_mov_b32 exec_lo, 0
    v_mov_b32 v{P0 + 6}, 0
    v_mov_b32 v{P0 + 7}, 0
    s_mov_b32 exec_lo, -1
    buffer_store_dwordx4 {vr(P0)}, v{vL16}, s[4:7], s40 offen
    buffer_store_dwordx4 {vr(P0 + 4)}, v{vL16}, s[4:7], s40 offen offset:1024
    """)
    return k.finish()


def gen_gemm_ksplit(name, mode):
    KS = 32 if mode == 'wo' else 112
    kw = KS // 4
    XIN, WIN = (OB, WO_P) if mode == 'wo' else (HB, W2_P)
    RES = XA if mode == 'wo' else XB
    XOUT, STOUT = (XB, STB) if mode == 'wo' else (XA, STA)
    k = Kernel(name, 224, 96 * KB, 256)
    a = k.a
    ws_prologue(a)
    vL16 = 1
    ACC = 16
    RING = 80
    DEPTH = min(10, kw)
    RS = 240
    BI = 248
    bias = mode != 'wo'
    if bias:
        a.e("s_load_dwordx2 s[28:29], s[0:1], 56")
    if mode == 'ffn2_out':
        a.e("s_load_dwordx2 s[32:33], s[0:1], 64")
    a.e(f"""
    s_and_b32 s13, s2, 7
    s_lshr_b32 s14, s2, 3
    s_mul_i32 s15, s14, 37
    s_lshr_b32 s15, s15, 8                 ; q = idx/7
    s_mul_i32 s16, s15, 7
    s_sub_u32 s16, s14, s16                ; cg
    s_lshl_b32 s13, s13, 2
    s_add_u32 s15, s15, s13
    s_lshr_b32 s17, s8, 1
    s_and_b32 s18, s8, 1
    s_lshl_b32 s19, s15, 1
    s_add_u32 s19, s19, s17
    s_xor_b32 s20, s19, 1
    s_lshl_b32 s21, s16, 1
    s_add_u32 s21, s21, s18
    s_xor_b32 s22, s21, 1
    s_mul_i32 s23, s8, {kw * KB}
    s_mul_i32 s9, s19, {KS * KB}
    s_mul_i32 s10, s20, {KS * KB}
    s_mul_i32 s11, s21, {KS * KB}
    s_mul_i32 s12, s22, {KS * KB}
    s_add_u32 s24, s23, {XIN}
    s_add_u32 s25, s23, {WIN}
    s_add_u32 s9, s9, s24
    s_add_u32 s10, s10, s24
    s_add_u32 s11, s11, s25
    s_add_u32 s12, s12, s25
    s_mul_i32 s26, s19, 28
    s_lshl_b32 s27, s21, 1
    s_add_u32 s26, s26, s27
    s_lshl_b32 s26, s26, 10
    s_add_u32 s27, s26, {RES}
    s_mov_b32 s30, 896
    s_mov_b32 s31, 0x20000
    s_mov_b32 s34, {S * D * 2}
    s_mov_b32 s35, 0x20000
    s_waitcnt lgkmcnt(0)
    """)

    def slot(ks): return RING + 16 * (ks % DEPTH)

    def issue(ks):
        b = slot(ks)
        off = (ks & 3) * KB
        it = []
        for i, sr in enumerate((9, 11, 10, 12)):
            it.append(lambda i=i, sr=sr: a.vmem(f"buffer_load_dwordx4 {vr(b + 4 * i)}, v{vL16}, s[4:7], s{sr} offen offset:{off}", ('k', ks, i)))
        if (ks & 3) == 3 and ks + 1 < kw:
            it.append(lambda: a.e("s_add_u32 s9, s9, 4096\ns_add_u32 s10, s10, 4096\ns_add_u32 s11, s11, 4096\ns_add_u32 s12, s12, 4096"))
        return it

    for ks in range(DEPTH):
        for f in issue(ks):
            f()
    a.vmem(f"buffer_load_dwordx4 {vr(RS)}, v{vL16}, s[4:7], s27 offen", 'res')
    a.vmem(f"buffer_load_dwordx4 {vr(RS + 4)}, v{vL16}, s[4:7], s27 offen offset:1024", 'res')
    a.e("v_lshrrev_b32 v3, 5, v0")
    if bias:
        a.e("v_lshlrev_b32 v4, 3, v3\ns_lshl_b32 s36, s21, 6")
        for g in range(4):
            a.vmem(f"buffer_load_dwordx2 v[{BI + 2 * g}:{BI + 2 * g + 1}], v4, s[28:31], s36 offen offset:{16 * g}", 'res')
    for j in (1, 2, 3):
        a.e(f"""
        s_xor_b32 s40, s8, {j}
        s_mul_i32 s40, s40, {12 * KB}
        s_add_u32 s40, s40, {(j - 1) * 4 * KB}
        v_add_u32 v{4 + j}, s40, v{vL16}
        """)
    a.e(f"s_mul_i32 s40, s8, {12 * KB}\nv_add_u32 v8, s40, v{vL16}")
    for ks in range(kw):
        b = slot(ks)
        X0, W0, X1, W1 = b, b + 4, b + 8, b + 12
        seq = [(0, W0, X0, 1), (2, W0, X1, 2), (1, W1, X0, 3), (3, W1, X1, 3)]
        if ks == kw - 1:
            seq = [(2, W0, X1, 2), (1, W1, X0, 3), (3, W1, X1, 3), (0, W0, X0, 3)]
        for (j, A, B, need) in seq:
            a.wait(vm=[('k', ks, need)])
            acc = vr(ACC + 16 * j, 16)
            a.e(f"{MF} {acc}, {vr(A)}, {vr(B)}, " + ("0" if ks == 0 else acc))
        if ks + DEPTH < kw:
            for f in issue(ks + DEPTH):
                f()
    a.e("s_nop 7\ns_nop 1")
    for j in (2, 1, 3):
        for qd in range(4):
            a.e(f"ds_write_b128 v{4 + j}, {vr(ACC + 16 * j + 4 * qd)} offset:{qd * KB}")
    a.wait(vm='res')
    U = RING
    for i in range(8):
        a.e(f"v_lshlrev_b32 v{U + 2 * i}, 16, v{RS + i}")
        a.e(f"v_and_b32 v{U + 2 * i + 1}, 0xffff0000, v{RS + i}")
    for i in range(8):
        r = ACC + 2 * i
        a.e(f"v_pk_add_f32 v[{r}:{r + 1}], v[{r}:{r + 1}], v[{U + 2 * i}:{U + 2 * i + 1}]")
    if bias:
        for i in range(8):
            a.e(f"v_lshlrev_b32 v{U + 2 * i}, 16, v{BI + i}")
            a.e(f"v_and_b32 v{U + 2 * i + 1}, 0xffff0000, v{BI + i}")
        for i in range(8):
            r = ACC + 2 * i
            a.e(f"v_pk_add_f32 v[{r}:{r + 1}], v[{r}:{r + 1}], v[{U + 2 * i}:{U + 2 * i + 1}]")
    a.e("s_waitcnt lgkmcnt(0)\ns_barrier")
    a.lg = []
    for j in range(3):
        for qd in range(4):
            a.lds(f"ds_read_b128 {vr(ACC + 16 * (j + 1) + 4 * qd)}, v8 offset:{(j * 4 + qd) * KB}", ('o', j))
    for j in range(3):
        a.wait(lg=[('o', j)])
        for i in range(8):
            r = ACC + 2 * i
            s = ACC + 16 * (j + 1) + 2 * i
            a.e(f"v_pk_add_f32 v[{r}:{r + 1}], v[{r}:{r + 1}], v[{s}:{s + 1}]")
    for i in range(8):
        a.e(f"v_cvt_pk_bf16_f32 v{U + i}, v{ACC + 2 * i}, v{ACC + 2 * i + 1}")
    if mode == 'ffn2_out':
        a.e(f"""
        v_and_b32 v4, 31, v0
        v_mul_u32_u24 v4, 896, v4
        v_lshl_add_u32 v4, v3, 3, v4
        s_mul_i32 s36, s19, {32 * 896}
        s_lshl_b32 s37, s21, 6
        s_add_u32 s36, s36, s37
        """)
        for g in range(4):
            a.e(f"buffer_store_dwordx2 v[{U + 2 * g}:{U + 2 * g + 1}], v4, s[32:35], s36 offen offset:{16 * g}")
    else:
        a.e(f"s_add_u32 s27, s26, {XOUT}")
        a.e(f"buffer_store_dwordx4 {vr(U)}, v{vL16}, s[4:7], s27 offen")
        a.e(f"buffer_store_dwordx4 {vr(U + 4)}, v{vL16}, s[4:7], s27 offen offset:1024")
        a.e("v_mov_b32 v9, 0x3f803f80\nv_mov_b32 v10, 0\nv_mov_b32 v11, 0")
        for i in range(8):
            a.e(f"v_dot2_f32_bf16 v10, v{U + i}, v9, v10")
            a.e(f"v_dot2_f32_bf16 v11, v{U + i}, v{U + i}, v11")
        a.e(f"""
        s_mul_i32 s36, s19, 14
        s_add_u32 s36, s36, s21
        s_lshl_b32 s36, s36, 8
        s_add_u32 s36, s36, {STOUT}
        v_lshlrev_b32 v12, 2, v0
        v_permlane32_swap_b32 v10, v11
        v_add_f32 v10, v10, v11
        buffer_store_dword v10, v12, s[4:7], s36 offen
        """)
    return k.finish()


HEADER = open(f"cdna_kernels/{NAME}.s.ref").read().split("; Override launch")[0]


def build(path, extra_launches=()):
    ks = {}
    for kk in (gen_prep(), gen_gemm_rows("qkv_kernel", 'qkv'), gen_attn(), gen_gemm_ksplit("wo_kernel", 'wo'),
               gen_gemm_rows("ffn1_kernel", 'ffn1'), gen_gemm_ksplit("ffn2_kernel", 'ffn2'),
               gen_gemm_ksplit("ffn2o_kernel", 'ffn2_out')):
        ks[kk.name] = kk
    order = ["prep", "qkv", "attn", "wo", "ffn1", "ffn2", "qkv", "attn", "wo", "ffn1", "ffn2o"]
    out = HEADER
    for n in order:
        out += ks[n + "_kernel"].launch() + "\n"
    for l in extra_launches:
        out += l + "\n"
    out += '.amdgcn_target "amdgcn-amd-amdhsa--gfx950"\n.text\n'
    for kk in ks.values():
        out += kk.a.text()
    out += '.section .rodata,"a"\n'
    for kk in ks.values():
        out += kk.kd
    open(path, "w").write(out)


if __name__ == "__main__":
    path = sys.argv[1] if len(sys.argv) > 1 else f"cdna_kernels/{NAME}.s"
    build(path)
    print("wrote", path, "ws", WS_SIZE)
```

```python
import sys, re
import gen
NAME = gen.NAME
base = open(f"cdna_kernels/{NAME}.s").read()
def add_empty(n, path, grid=256):
    lines = base.split("\n")
    idx = max(i for i,l in enumerate(lines) if l.startswith("; @launch"))
    extra = [f"; @launch kernel=empty_kernel grid=({grid},1,1) block=(256,1,1) lds=0"]*n
    lines = lines[:idx+1] + extra + lines[idx+1:]
    t = "\n".join(lines)
    t = t.replace('.section .rodata,"a"\n', '''.globl empty_kernel
.p2align 8
.type empty_kernel,@function
empty_kernel:
    s_endpgm
.section .rodata,"a"
.p2align 6
.amdhsa_kernel empty_kernel
  .amdhsa_next_free_vgpr 8
  .amdhsa_next_free_sgpr 16
  .amdhsa_accum_offset 8
  .amdhsa_group_segment_fixed_size 0
  .amdhsa_kernarg_size 88
  .amdhsa_user_sgpr_count 2
  .amdhsa_user_sgpr_kernarg_segment_ptr 1
  .amdhsa_system_sgpr_workgroup_id_x 1
.end_amdhsa_kernel
''')
    open(path,"w").write(t)
add_empty(10, "var_e10.s")
add_empty(20, "var_e20.s")
open("var_e0.s","w").write(base)
```

```python
import re

REG_RE = re.compile(r'^(-?\|?)([vas])(\d+)\|?$')
RNG_RE = re.compile(r'^(-?\|?)([vas])\[(\d+):(\d+)\]\|?$')


def regs_of(op):
    op = op.strip()
    m = RNG_RE.match(op)
    if m:
        return {(m.group(2), i) for i in range(int(m.group(3)), int(m.group(4)) + 1)}
    m = REG_RE.match(op)
    if m:
        return {(m.group(2), int(m.group(3)))}
    if op in ('vcc', 'vcc_lo', 'vcc_hi'):
        return {('vcc', 0)}
    if op in ('exec', 'exec_lo', 'exec_hi'):
        return {('exec', 0)}
    if op == 'm0':
        return {('m0', 0)}
    return set()


TRANS = ('v_exp_f32', 'v_log_f32', 'v_rcp_f32', 'v_rsq_f32', 'v_sqrt_f32', 'v_sin_f32', 'v_cos_f32')


class Ins:
    __slots__ = ('text', 'op', 'ops', 'rd', 'wr', 'kind', 'passes', 'srcA', 'srcB', 'srcC', 'nop', 'wide_store')

    def __init__(self, text):
        self.text = text
        t = text.split(';')[0].strip()
        parts = t.split(None, 1)
        self.op = parts[0]
        rest = parts[1] if len(parts) > 1 else ''
        ops = [o.strip() for o in rest.split(',')] if rest else []
        if ops:
            ops[-1] = ops[-1].split()[0] if ops[-1].split() else ops[-1]
            ops = [o.split()[0] if o.split() else o for o in ops]
        self.ops = ops
        self.rd = set()
        self.wr = set()
        self.passes = 0
        self.srcA = self.srcB = self.srcC = set()
        self.nop = 1
        self.wide_store = set()
        op = self.op
        mods = t
        if op == 's_nop':
            self.kind = 'nop'
            self.nop = int(ops[0], 0) + 1
        elif op.startswith('v_mfma'):
            self.kind = 'mfma'
            self.passes = 8 if '32x32x16' in op else 4
            self.wr = regs_of(ops[0])
            self.srcA, self.srcB, self.srcC = regs_of(ops[1]), regs_of(ops[2]), regs_of(ops[3])
            self.rd = self.srcA | self.srcB | self.srcC
        elif op.startswith('v_'):
            self.kind = 'trans' if op in TRANS else 'valu'
            if op.startswith('v_dot'):
                self.kind = 'dot'
            if op.startswith('v_permlane'):
                self.kind = 'permlane'
                self.wr = regs_of(ops[0]) | regs_of(ops[1])
                self.rd = set(self.wr)
            else:
                self.wr = regs_of(ops[0])
                n = 1
                if op.startswith(('v_add_co', 'v_sub_co', 'v_addc_co', 'v_subb_co')):
                    self.wr |= regs_of(ops[1])
                    n = 2
                for o in ops[n:]:
                    self.rd |= regs_of(o)
                if op.startswith(('v_fmac', 'v_dot2c')) or 'UNUSED_PRESERVE' in mods:
                    self.rd |= self.wr
                if op.startswith('v_cmpx'):
                    self.wr |= {('exec', 0)}
                if op.startswith(('v_readfirstlane', 'v_readlane')):
                    self.kind = 'readlane'
        elif op.startswith('buffer_') or op.startswith('global_'):
            self.kind = 'vmem'
            if op in ('buffer_wbl2', 'buffer_inv'):
                pass
            elif re.search(r'\blds\b', mods) or 'load_lds' in op:
                for o in ops:
                    self.rd |= regs_of(o)
                self.rd |= {('m0', 0)}
                self.kind = 'vmem_lds'
            elif 'load' in op:
                self.wr = regs_of(ops[0])
                for o in ops[1:]:
                    self.rd |= regs_of(o)
            else:
                for o in ops:
                    self.rd |= regs_of(o)
                if 'atomic' in op and re.search(r'\bsc0\b', mods):
                    self.wr = regs_of(ops[0])
                if 'x4' in op or 'x3' in op:
                    self.wide_store = regs_of(ops[0]) if op.startswith('buffer_') else regs_of(ops[1])
        elif op.startswith('ds_'):
            self.kind = 'ds'
            if 'read' in op or 'permute' in op or 'swizzle' in op:
                self.wr = regs_of(ops[0])
                for o in ops[1:]:
                    self.rd |= regs_of(o)
            else:
                for o in ops:
                    self.rd |= regs_of(o)
        elif op.startswith('s_'):
            self.kind = 'salu'
            if op.startswith(('s_cmp', 's_cbranch', 's_branch', 's_waitcnt', 's_barrier', 's_endpgm', 's_setprio', 's_sleep', 's_bitcmp')):
                for o in ops:
                    self.rd |= regs_of(o)
            else:
                if ops:
                    self.wr = regs_of(ops[0])
                for o in ops[1:]:
                    self.rd |= regs_of(o)
                if 'saveexec' in op:
                    self.wr |= {('exec', 0)}
        else:
            raise ValueError('unknown instr ' + text)


VALU_KINDS = ('valu', 'trans', 'dot', 'permlane', 'readlane')


def vg(s):
    return {r for r in s if r[0] in ('v', 'a')}


def sg(s):
    return {r for r in s if r[0] in ('s', 'vcc')}


def need(p, c):
    n = 0
    pv = p.kind in VALU_KINDS
    cv = c.kind in VALU_KINDS
    if p.kind == 'mfma':
        big = p.passes == 8
        D = p.wr
        if c.kind == 'mfma':
            if D & (c.srcA | c.srcB):
                n = max(n, 12 if big else 8)
            if D & c.srcC:
                if not (c.srcC == D and c.passes == p.passes):
                    n = max(n, 10 if big else 6)
            elif D & c.wr:
                n = max(n, 10 if big else 6)
        else:
            if D & (c.rd | c.wr):
                n = max(n, 12 if big else 8)
        if cv and (p.srcC & c.wr):
            n = max(n, 7 if big else 3)
    if pv:
        w = vg(p.wr)
        if c.kind == 'mfma' and (w & c.rd):
            n = max(n, 2)
        if c.kind == 'permlane' and (w & c.rd):
            n = max(n, 2)
        if c.kind == 'readlane' and (w & c.rd):
            n = max(n, 1)
        if p.kind == 'trans' and cv and c.kind != 'trans' and (w & c.rd):
            n = max(n, 1)
        if p.kind == 'trans' and c.kind in ('vmem', 'ds', 'vmem_lds', 'mfma') and (w & c.rd):
            n = max(n, 1)
        if p.kind == 'dot' and (w & (c.rd | c.wr)):
            if not (c.op == p.op and not (w & (regs_of(c.ops[1]) | regs_of(c.ops[2])))):
                n = max(n, 3)
        if 'sdwa' in p.op and cv and (w & c.rd):
            n = max(n, 1)
        ws = sg(p.wr)
        if ws:
            if c.kind in ('vmem', 'vmem_lds') and (ws & c.rd):
                n = max(n, 5)
            if cv and (ws & c.rd):
                n = max(n, 4 if c.op.startswith(('v_readlane', 'v_writelane')) else 2)
        if ('exec', 0) in p.wr:
            if c.kind == 'mfma' or c.kind == 'permlane' or c.kind == 'readlane':
                n = max(n, 4)
    if p.kind == 'salu' and ('m0', 0) in p.wr and c.kind == 'vmem_lds':
        n = max(n, 1)
    if p.wide_store and (p.wide_store & c.wr):
        n = max(n, 2 if cv else 1)
    return n


class Asm:
    def __init__(self):
        self.lines = []
        self.vm = []
        self.lg = []
        self.issued = set()

    def raw(self, t):
        self.lines.append(t)

    def label(self, l):
        self.lines.append(l + ':')

    def e(self, t):
        for l in t.strip().split('\n'):
            l = l.strip()
            if l:
                self.lines.append('    ' + l)

    def vmem(self, t, tag=None):
        self.e(t)
        self.vm.append(tag)
        self.issued.add(tag)

    def lds(self, t, tag=None):
        self.e(t)
        self.lg.append(tag)
        self.issued.add(tag)

    def _cnt(self, q, tags):
        if not isinstance(tags, (list, tuple, set)):
            tags = [tags]
        for t in tags:
            assert t in self.issued, ('wait on never-issued tag', t)
        last = -1
        for i, t in enumerate(q):
            if t in tags:
                last = i
        return None if last < 0 else len(q) - 1 - last

    def wait(self, vm=None, lg=None):
        parts = []
        if vm is not None:
            n = self._cnt(self.vm, vm)
            if n is not None:
                assert n <= 63, n
                parts.append(f'vmcnt({n})')
                self.vm = self.vm[len(self.vm) - n:] if n else []
        if lg is not None:
            n = self._cnt(self.lg, lg)
            if n is not None:
                assert n <= 15, n
                parts.append(f'lgkmcnt({n})')
                self.lg = self.lg[len(self.lg) - n:] if n else []
        if parts:
            self.e('s_waitcnt ' + ' '.join(parts))

    def wait_all(self, vm=False, lg=False):
        parts = []
        if vm:
            parts.append('vmcnt(0)')
            self.vm = []
        if lg:
            parts.append('lgkmcnt(0)')
            self.lg = []
        self.e('s_waitcnt ' + ' '.join(parts))

    def text(self):
        return '\n'.join(self.lines) + '\n'


def check_hazards(lines, name=''):
    ins = []
    labels = {}
    for l in lines:
        s = l.split(';')[0].strip()
        if not s or s.startswith('.'):
            continue
        if s.endswith(':'):
            labels[s[:-1]] = len(ins)
            continue
        ins.append(Ins(s))
    n = len(ins)
    problems = []

    def succ(i):
        x = ins[i]
        if x.op == 's_endpgm':
            return []
        if x.op == 's_branch':
            return [labels[x.ops[0]]]
        r = [i + 1] if i + 1 < n else []
        if x.op.startswith('s_cbranch'):
            r.append(labels[x.ops[0]])
        return r

    for i, p in enumerate(ins):
        if not (p.wr or p.srcC or p.wide_store):
            continue
        if p.kind not in VALU_KINDS and p.kind != 'mfma' and not p.wide_store and ('m0', 0) not in p.wr:
            continue
        stack = [(j, 0) for j in succ(i)]
        seen = {}
        while stack:
            j, d = stack.pop()
            if j >= n or d >= 13:
                continue
            if j in seen and seen[j] <= d:
                continue
            seen[j] = d
            c = ins[j]
            k = need(p, c)
            if k > d:
                problems.append(f'{name}: need {k} have {d}: [{i}] {p.text}  ->  [{j}] {c.text}')
            for s_ in succ(j):
                stack.append((s_, d + c.nop))
    return problems
```

```python
import sys, struct, math, os
from asmlib import Asm, check_hazards

NAME = "interleave_layers__softmax_full_mha__dense_activation_squared_relu__prompt"
S, D, H, DH, F = 2048, 448, 16, 28, 1792
KB = 1024
INSTR = int(os.environ.get("INSTR", "0"))
FORCE_SLOW = int(os.environ.get("FORCE_SLOW", "0"))


def f2u(x):
    return struct.unpack('<I', struct.pack('<f', x))[0]


_off = 0


def alloc(n):
    global _off
    o = _off
    _off = (_off + n + 4095) // 4096 * 4096
    return o


KVB = alloc(2 * 16 * 64 * 4 * KB)
KVSTRIDE = 16 * 64 * 4 * KB
WQKV_P = alloc(16 * 87 * KB + KB)
WO_P = alloc(14 * 32 * KB)
W1_P = alloc(14 * 116 * KB)
W2_P = alloc(14 * 112 * KB)
FLG = alloc(48 * KB)
FE, FB, FC, FD, FA = FLG, FLG + 8 * KB, FLG + 16 * KB, FLG + 24 * KB, FLG + 32 * KB
XIN = alloc(64 * 28 * KB)
STIN = alloc(64 * 14 * 256)
XMID = alloc(64 * 28 * KB)
STMID = alloc(64 * 14 * 256)
OB = alloc(64 * 32 * KB)
HB = alloc(64 * 112 * KB)
TSB = alloc(2 * 256 * 4 * 256)
WS_SIZE = _off + 64 * KB

MF = "v_mfma_f32_32x32x16_bf16"
SCR = 112 * KB
LDS_TOTAL = 160 * KB


def vr(b, n=4):
    return f"v[{b}:{b + n - 1}]"


def ar(b, n=4):
    return f"a[{b}:{b + n - 1}]"


class Kernel:
    def __init__(self, name, nwg, lds, nvgpr, nsgpr=64, accum=None):
        self.name, self.nwg, self.ldsb, self.nvgpr, self.nsgpr = name, nwg, lds, nvgpr, nsgpr
        self.accum = accum
        self.a = Asm()
        a = self.a
        a.raw(f".globl {name}")
        a.raw(".p2align 8")
        a.raw(f".type {name},@function")
        a.label(name)
        a.e(f"s_cmp_ge_u32 s2, {nwg}")
        a.e(f"s_cbranch_scc1 L_{name}_end")
        self.tail = []

    def finish(self):
        a = self.a
        a.label(f"L_{self.name}_end")
        a.e("s_endpgm")
        for t in self.tail:
            t()
        probs = check_hazards(a.lines, self.name)
        for p in probs:
            print("HAZARD", p, file=sys.stderr)
        assert not probs
        nv = self.accum if self.accum else (self.nvgpr + 3) // 4 * 4
        self.kd = f""".p2align 6
.amdhsa_kernel {self.name}
  .amdhsa_next_free_vgpr {self.nvgpr}
  .amdhsa_next_free_sgpr {self.nsgpr}
  .amdhsa_accum_offset {nv}
  .amdhsa_group_segment_fixed_size 0
  .amdhsa_kernarg_size 88
  .amdhsa_user_sgpr_count 2
  .amdhsa_user_sgpr_kernarg_segment_ptr 1
  .amdhsa_system_sgpr_workgroup_id_x 1
.end_amdhsa_kernel
"""
        return self

    def launch(self):
        return f"; @launch kernel={self.name} grid=({self.nwg},1,1) block=(256,1,1) lds={self.ldsb}"


def ws_prologue(a, vL16=1, vT=2):
    a.e(f"""
    s_load_dwordx2 s[4:5], s[0:1], 80
    v_lshrrev_b32 v{vT}, 6, v0
    v_and_b32 v0, 63, v0
    s_mov_b32 s6, {WS_SIZE}
    v_readfirstlane_b32 s8, v{vT}
    s_mov_b32 s7, 0x20000
    v_lshlrev_b32 v{vL16}, 4, v0
    """)


def gen_prep():
    k = Kernel("prep_kernel", 250, 4096, 96)
    a = k.a
    ws_prologue(a)
    a.e("""
    s_load_dwordx4 s[20:23], s[0:1], 0     ; x, wqkv
    s_load_dwordx2 s[24:25], s[0:1], 16    ; wo
    s_load_dwordx4 s[28:31], s[0:1], 32    ; w1, b1
    s_load_dwordx2 s[32:33], s[0:1], 48    ; w2
    v_and_b32 v3, 31, v0                   ; n / row
    v_lshrrev_b32 v4, 5, v0                ; hi
    s_mov_b32 s15, 0x20000
    s_mov_b32 s19, 0x20000
    s_waitcnt lgkmcnt(0)
    s_mov_b32 s16, s30                     ; b1 SRD s[16:19]
    s_mov_b32 s17, s31
    s_mov_b32 s18, 3584
    s_cmp_ge_u32 s2, 238
    s_cbranch_scc1 L_prep_flags
    s_cmp_ge_u32 s2, 174
    s_cbranch_scc1 L_prep_x
    s_cmp_ge_u32 s2, 48
    s_cbranch_scc1 L_prep_notqkv
    """)
    a.e(f"""
    s_mov_b32 s12, s22
    s_mov_b32 s13, s23
    s_mov_b32 s14, {448 * 1344 * 2}
    s_mov_b32 s34, 2688
    s_lshr_b32 s44, s2, 4
    s_and_b32 s45, s2, 15
    s_mul_i32 s35, s44, 896
    s_mul_i32 s46, s45, 56
    s_add_u32 s35, s35, s46
    s_mov_b32 s36, 28
    s_mul_i32 s37, s8, 112
    s_mul_i32 s38, s45, {87 * KB}
    s_add_u32 s38, s38, {WQKV_P}
    s_sub_u32 s46, s44, 1
    s_lshl_b32 s46, s46, 10
    s_cmp_eq_u32 s44, 0
    s_cselect_b32 s46, {58 * KB}, s46
    s_cselect_b32 s39, 1, 2
    s_lshl_b32 s39, s39, 10
    s_add_u32 s38, s38, s46
    s_mul_i32 s46, s39, 28
    s_add_u32 s41, s38, s46
    s_mul_i32 s46, s8, 7
    s_mul_i32 s46, s46, s39
    s_add_u32 s38, s38, s46
    s_mov_b32 s40, 1
    s_mov_b32 s42, 0
    s_cmp_eq_u32 s44, 0
    s_cbranch_scc1 L_prep_go
    s_add_u32 s42, s44, 1
    s_branch L_prep_go
    """)
    a.label("L_prep_notqkv")
    a.e("""
    s_cmp_ge_u32 s2, 104
    s_cbranch_scc1 L_prep_notw1
    """)
    a.e(f"""
    s_mov_b32 s12, s28
    s_mov_b32 s13, s29
    s_mov_b32 s14, {448 * 1792 * 2}
    s_mov_b32 s34, 3584
    s_sub_u32 s44, s2, 48
    s_lshl_b32 s35, s44, 6
    s_mov_b32 s43, s35
    s_mov_b32 s36, 32
    s_mul_i32 s37, s8, 112
    s_lshr_b32 s45, s44, 2
    s_mul_i32 s38, s45, {116 * KB}
    s_and_b32 s45, s44, 3
    s_lshl_b32 s45, s45, 10
    s_add_u32 s38, s38, s45
    s_add_u32 s38, s38, {W1_P}
    s_add_u32 s41, s38, {28 * 4 * KB}
    s_mul_i32 s46, s8, {7 * 4 * KB}
    s_add_u32 s38, s38, s46
    s_mov_b32 s39, {4 * KB}
    s_mov_b32 s40, 1
    s_mov_b32 s42, 1
    s_branch L_prep_go
    """)
    a.label("L_prep_notw1")
    a.e("""
    s_cmp_ge_u32 s2, 160
    s_cbranch_scc1 L_prep_wo
    """)
    a.e(f"""
    s_mov_b32 s12, s32
    s_mov_b32 s13, s33
    s_mov_b32 s14, {1792 * 448 * 2}
    s_mov_b32 s34, 896
    s_sub_u32 s44, s2, 104
    s_lshr_b32 s45, s44, 2
    s_and_b32 s44, s44, 3
    s_lshl_b32 s35, s45, 6
    s_mov_b32 s36, 32
    s_mul_i32 s46, s44, 28
    s_mul_i32 s47, s8, 7
    s_add_u32 s46, s46, s47
    s_lshl_b32 s37, s46, 4
    s_mul_i32 s38, s45, 112
    s_add_u32 s38, s38, s46
    s_lshl_b32 s38, s38, 10
    s_add_u32 s38, s38, {W2_P}
    s_mov_b32 s39, {KB}
    s_mov_b32 s40, 0
    s_mov_b32 s41, 0
    s_mov_b32 s42, 0
    s_branch L_prep_go
    """)
    a.label("L_prep_wo")
    a.e(f"""
    s_mov_b32 s12, s24
    s_mov_b32 s13, s25
    s_mov_b32 s14, {448 * 448 * 2}
    s_mov_b32 s34, 896
    s_sub_u32 s45, s2, 160
    s_lshl_b32 s35, s45, 6
    s_mov_b32 s36, 32
    s_mul_i32 s37, s8, 112
    s_lshl_b32 s38, s45, 5
    s_lshl_b32 s46, s8, 3
    s_add_u32 s38, s38, s46
    s_lshl_b32 s38, s38, 10
    s_add_u32 s38, s38, {WO_P}
    s_mov_b32 s39, {KB}
    s_mov_b32 s40, 2
    s_mov_b32 s41, 0
    s_mov_b32 s42, 0
    """)
    a.label("L_prep_go")
    for j, r in enumerate([0, 1, 2, 3, 8, 9, 10, 11]):
        a.e(f"s_mul_i32 s{48 + j}, s34, {r}")
    a.e("""
    v_lshlrev_b32 v5, 2, v4
    v_add_u32 v5, s37, v5
    v_mul_lo_u32 v5, v5, s34
    v_lshl_add_u32 v5, v3, 1, v5
    v_add_u32 v5, s35, v5
    v_mov_b32 v6, 0x40000000
    v_cmp_gt_u32 vcc, s36, v3
    s_lshl_b32 s56, s34, 4                 ; 16 rows
    s_mul_i32 s57, s34, 12
    v_cndmask_b32 v5, v6, v5, vcc
    v_cmp_eq_u32 vcc, 1, v4
    s_cmp_eq_u32 s40, 2
    s_cbranch_scc1 L_prep_wo_loop
    """)
    for i in range(7):
        for j in range(8):
            a.vmem(f"buffer_load_ushort v{16 + 8 * i + j}, v5, s[12:15], s{48 + j} offen", ('w', i))
        if i < 6:
            a.e("v_add_u32 v5, s56, v5")
    a.e("v_mov_b32 v8, 0x3f803f80\nv_mov_b32 v9, 0x3f803f80\nv_mov_b32 v10, 0x3f803f80\nv_mov_b32 v11, 0x3f803f80")
    for i in range(7):
        a.wait(vm=[('w', i)])
        b = 16 + 8 * i
        for j in range(4):
            a.e(f"v_lshl_or_b32 v{b + j}, v{b + 2 * j + 1}, 16, v{b + 2 * j}")
        a.vmem(f"buffer_store_dwordx4 {vr(b)}, v1, s[4:7], s38 offen", 'st')
        a.e("s_add_u32 s38, s38, s39")
        a.e(f"{MF} v[80:95], v[8:11], {vr(b)}, " + ("0" if i == 0 else "v[80:95]"))
    a.e("""
    s_cmp_eq_u32 s40, 0
    s_cbranch_scc1 L_prep_kernel_end
    """)
    a.e("""
    v_lshlrev_b32 v12, 2, v0
    s_lshl_b32 s44, s8, 8
    v_add_u32 v13, s44, v12
    v_lshlrev_b32 v14, 1, v3
    v_add_u32 v14, s43, v14
    s_nop 7
    s_nop 1
    ds_write_b32 v13, v80
    s_waitcnt lgkmcnt(0)
    s_barrier
    s_cmp_lg_u32 s8, 0
    s_cbranch_scc1 L_prep_kernel_end
    ds_read_b32 v16, v12
    ds_read_b32 v17, v12 offset:256
    ds_read_b32 v18, v12 offset:512
    ds_read_b32 v19, v12 offset:768
    v_mov_b32 v22, 0
    s_cmp_lg_u32 s42, 1
    s_cbranch_scc1 L_prep_nob1
    buffer_load_ushort v22, v14, s[16:19], 0 offen
    s_waitcnt vmcnt(0)
    v_lshl_or_b32 v22, v22, 16, v22
    s_branch L_prep_biasdone
    """)
    a.label("L_prep_nob1")
    a.e("""
    s_cmp_eq_u32 s42, 0
    s_cbranch_scc1 L_prep_biasdone
    s_mov_b32 s44, 31
    s_cmp_eq_u32 s42, 2
    s_cselect_b32 s44, 31, 29
    v_mov_b32 v23, 0x3f803f80
    v_cmp_le_u32 s[46:47], 28, v3
    v_cmp_gt_u32 s[58:59], s44, v3
    s_and_b64 s[46:47], s[46:47], s[58:59]
    s_nop 1
    v_cndmask_b32 v22, v22, v23, s[46:47]
    """)
    a.label("L_prep_biasdone")
    a.e("""
    s_waitcnt lgkmcnt(0)
    v_add_f32 v16, v16, v17
    v_add_f32 v18, v18, v19
    v_add_f32 v16, v16, v18
    v_cvt_pk_bf16_f32 v17, v16, v16
    v_lshlrev_b32 v17, 16, v17
    v_sub_f32 v17, v16, v17
    v_cvt_pk_bf16_f32 v20, v16, v17
    v_mov_b32 v23, 0
    v_cmp_eq_u32 vcc, 1, v4
    s_nop 1
    v_cndmask_b32 v20, v20, v23, vcc
    v_cndmask_b32 v22, v22, v23, vcc
    v_mov_b32 v21, v20
    buffer_store_dwordx4 v[20:23], v1, s[4:7], s41 offen
    s_branch L_prep_kernel_end
    """)
    a.vm = []
    a.label("L_prep_wo_loop")
    for i in range(8):
        if i & 1:
            a.e("v_cndmask_b32 v7, v5, v6, vcc")
        for j in range(8):
            va = "v7" if ((i & 1) and j >= 4) else "v5"
            a.vmem(f"buffer_load_ushort v{16 + 8 * i + j}, {va}, s[12:15], s{48 + j} offen", ('w', i))
            if i == 7 and j == 0:
                a.wait(vm=[('w', 0)])
        if i < 7:
            a.e(f"v_add_u32 v5, {'s57' if (i & 1) else 's56'}, v5")
    for i in range(8):
        a.wait(vm=[('w', i)])
        b = 16 + 8 * i
        for j in range(4):
            a.e(f"v_lshl_or_b32 v{b + j}, v{b + 2 * j + 1}, 16, v{b + 2 * j}")
        a.vmem(f"buffer_store_dwordx4 {vr(b)}, v1, s[4:7], s38 offen", 'st')
        a.e("s_add_u32 s38, s38, s39")
    a.e("s_branch L_prep_kernel_end")
    a.vm = []
    a.label("L_prep_flags")
    a.e(f"""
    s_sub_u32 s44, s2, 238
    s_lshl_b32 s45, s44, 2
    s_add_u32 s45, s45, s8
    s_lshl_b32 s45, s45, 10
    s_add_u32 s45, s45, {FLG}
    v_mov_b32 v8, 0
    v_mov_b32 v9, 0
    v_mov_b32 v10, 0
    v_mov_b32 v11, 0
    buffer_store_dwordx4 v[8:11], v1, s[4:7], s45 offen
    s_branch L_prep_kernel_end
    """)
    a.label("L_prep_x")
    a.e(f"""
    s_mov_b32 s12, s20
    s_mov_b32 s13, s21
    s_mov_b32 s14, {S * D * 2}
    s_sub_u32 s44, s2, 174
    s_mul_i32 s45, s44, {32 * 896}
    s_mul_i32 s46, s8, {7 * 32}
    s_add_u32 s45, s45, s46
    v_mul_u32_u24 v5, 896, v3
    v_lshl_add_u32 v5, v4, 3, v5
    s_mul_i32 s38, s44, 28
    s_mul_i32 s46, s8, 7
    s_add_u32 s38, s38, s46
    s_lshl_b32 s38, s38, 10
    s_add_u32 s38, s38, {XIN}
    v_mov_b32 v8, 0x3f803f80
    v_mov_b32 v10, 0
    v_mov_b32 v11, 0
    """)
    for i in range(7):
        b = 16 + 4 * i
        a.vmem(f"buffer_load_dwordx2 v[{b}:{b + 1}], v5, s[12:15], s45 offen offset:{32 * i}", ('x', i))
        a.vmem(f"buffer_load_dwordx2 v[{b + 2}:{b + 3}], v5, s[12:15], s45 offen offset:{32 * i + 16}", ('x', i))
    for i in range(7):
        b = 16 + 4 * i
        a.wait(vm=[('x', i)])
        a.vmem(f"buffer_store_dwordx4 {vr(b)}, v1, s[4:7], s38 offen", 'st')
        a.e("s_add_u32 s38, s38, 1024")
        for j in range(4):
            a.e(f"v_dot2_f32_bf16 v10, v{b + j}, v8, v10")
            a.e(f"v_dot2_f32_bf16 v11, v{b + j}, v{b + j}, v11")
    a.e(f"""
    s_mul_i32 s38, s44, {14 * 256}
    s_add_u32 s38, s38, {STIN}
    s_lshr_b32 s46, s8, 1
    s_lshl_b32 s46, s46, 9
    s_and_b32 s47, s8, 1
    s_lshl_b32 s47, s47, 2
    s_add_u32 s46, s46, s47
    s_add_u32 s38, s38, s46
    v_lshlrev_b32 v12, 3, v0
    v_mov_b32 v13, 0
    v_permlane32_swap_b32 v10, v11
    v_add_f32 v10, v10, v11
    buffer_store_dword v10, v12, s[4:7], s38 offen
    buffer_store_dword v13, v12, s[4:7], s38 offen offset:1024
    buffer_store_dword v13, v12, s[4:7], s38 offen offset:2048
    s_cmp_ge_u32 s8, 2
    s_cbranch_scc1 L_prep_kernel_end
    buffer_store_dword v13, v12, s[4:7], s38 offen offset:3072
    """)
    return k.finish()


sW = 8
sMODE, sBUD, sH, sRB, sRT, sROLE, sRTC, sNTC, sRTD, sCGD, sG, sXCC = range(24, 36)
sHI, sMC, sME = 36, 38, 40
sK = [None, 42, 43, 44, 45, 46, 47]
sKVST, sFA, sOST, sFBW, sFBP, sXO, sSO, sFO, sFCP, sHST, sFDW, sFDP, sFEP = range(48, 61)
vL16, vL16b, vL4, vXW, vXR, vTMP = 1, 2, 3, 4, 7, 255
A_W2, A_W1X, A_RES, A_B2 = 0, 224, 240, 248
OPT = lambda n, d=0: int(os.environ.get(n, str(d)))


def kofs(i):
    return ("0" if i < 4 else f"s{sK[i >> 2]}"), (i & 3) * KB


class Mega:
    def __init__(self):
        self.k = Kernel("mega_kernel", 256, LDS_TOTAL, 512, 102, accum=256)
        self.a = self.k.a
        self.uid = 0
        self.nstamp = 0
        self.fill = []

    def lab(self, p):
        self.uid += 1
        return f"L_{p}_{self.uid}"

    def stamp(self, force=False):
        if INSTR and (force or not OPT("BST")):
            n = self.nstamp
            assert n < 18
            self.a.e(f"s_memtime s[{64 + 2 * n}:{65 + 2 * n}]")
            self.nstamp += 1

    def flush_stamps(self, l):
        if not INSTR:
            return
        a = self.a
        a.e("s_memrealtime s[100:101]\ns_waitcnt lgkmcnt(0)")
        a.e(f"s_add_u32 s3, s2, {256 * l}\ns_lshl_b32 s3, s3, 2\ns_add_u32 s3, s3, s{sW}\ns_lshl_b32 s3, s3, 8\ns_add_u32 s3, s3, {TSB}")
        a.e("s_mov_b64 exec, 1")
        for n in range(self.nstamp):
            a.e(f"v_mov_b32 v{vTMP}, s{64 + 2 * n}\nbuffer_store_dword v{vTMP}, off, s[4:7], s3 offset:{4 * n}")
        a.e(f"v_mov_b32 v{vTMP}, s100\nbuffer_store_dword v{vTMP}, off, s[4:7], s3 offset:{4 * 30}")
        a.e(f"v_mov_b32 v{vTMP}, s{sMODE}\nbuffer_store_dword v{vTMP}, off, s[4:7], s3 offset:{4 * 31}")
        a.e("s_mov_b64 exec, -1")

    def pop(self, n=1):
        for _ in range(n):
            if self.fill:
                self.fill.pop(0)()

    def drain_fill(self):
        while self.fill:
            self.pop()

    def publish(self, sF, l):
        a = self.a
        ls, ld = self.lab("pub_slow"), self.lab("pub_done")
        a.e(f"v_mov_b32 v{vTMP}, 1\ns_cmp_lg_u32 s{sMODE}, 0\ns_mov_b64 exec, 1")
        a.wait_all(vm=True)
        a.e(f"s_cbranch_scc1 {ls}")
        a.e(f"buffer_store_dword v{vTMP}, off, s[4:7], s{sF} offset:{128 * l}")
        a.label(ld)
        a.e("s_mov_b64 exec, -1")
        a.vm.append('flag')

        def tail():
            a.label(ls)
            a.e(f"buffer_wbl2 sc1\ns_waitcnt vmcnt(0)\nbuffer_store_dword v{vTMP}, off, s[4:7], s{sF} offset:{128 * l} sc1\ns_branch {ld}")
        self.k.tail.append(tail)

    def poll(self, sF, mask, l):
        a = self.a
        lp, ld, ls, lr = self.lab("poll"), self.lab("poll_done"), self.lab("poll_slow"), self.lab("poll_ret")
        a.e(f"s_mov_b64 exec, {mask}")
        a.label(lp)
        a.e(f"""
        buffer_load_dword v{vTMP}, v{vL4}, s[4:7], s{sF} offen offset:{128 * l} sc1
        s_waitcnt vmcnt(0)
        v_cmp_eq_u32 vcc, 0, v{vTMP}
        s_cbranch_vccz {ld}
        s_sub_u32 s{sBUD}, s{sBUD}, 1
        s_cmp_gt_i32 s{sBUD}, 0
        s_cbranch_scc1 {lp}
        s_mov_b32 s{sBUD}, 0
        """)
        a.label(ld)
        a.e(f"s_mov_b64 exec, -1\ns_cmp_lg_u32 s{sMODE}, 0\ns_cbranch_scc1 {ls}")
        a.label(lr)
        a.vm = []

        def tail():
            a.label(ls)
            a.e(f"buffer_inv sc1\ns_waitcnt vmcnt(0)\ns_branch {lr}")
        self.k.tail.append(tail)

    def stats_load_items(self, vS, r):
        a = self.a
        return [lambda i=i: a.vmem(f"buffer_load_dwordx2 v[{r[2 * i]}:{r[2 * i + 1]}], v{vS}, s[4:7], 0 offen offset:{i * 512} sc1", 'st') for i in range(7)]

    def stats_items(self, r, XE, vR):
        a = self.a
        it = [lambda: a.wait(vm='st')]
        E = lambda s: it.append(lambda s=s: a.e(s))
        for i in range(7):
            E(f"v_add_f32 v{r[2 * i]}, v{r[2 * i]}, v{r[2 * i + 1]}")
        E(f"v_add_f32 v{r[0]}, v{r[0]}, v{r[2]}")
        E(f"v_add_f32 v{r[4]}, v{r[4]}, v{r[6]}")
        E(f"v_add_f32 v{r[8]}, v{r[8]}, v{r[10]}")
        E(f"v_add_f32 v{r[0]}, v{r[0]}, v{r[4]}")
        E(f"v_add_f32 v{r[8]}, v{r[8]}, v{r[12]}")
        E(f"v_add_f32 v{r[0]}, v{r[0]}, v{r[8]}")
        m, q, t, u, w = r[0], r[1], r[2], r[3], r[4]
        E(f"v_mul_f32 v{m}, {hex(f2u(1.0 / D))}, v{m}")
        E(f"v_mov_b32 v{q}, v{m}\ns_nop 1")
        E(f"v_permlane32_swap_b32 v{m}, v{q}")
        E(f"v_fma_f32 v{t}, -v{m}, v{m}, v{q}")
        E(f"v_max_f32 v{t}, 0, v{t}")
        E(f"v_add_f32 v{t}, {hex(f2u(1e-5))}, v{t}")
        E(f"v_rsq_f32 v{vR}, v{t}")
        E(f"v_cvt_pk_bf16_f32 v{XE}, -v{m}, -v{m}")
        E(f"v_mul_f32 v{t}, v{t}, v{vR}")
        E(f"v_lshlrev_b32 v{u}, 16, v{XE}")
        E(f"v_add_f32 v{u}, v{m}, v{u}")
        E(f"v_cvt_pk_bf16_f32 v{XE + 1}, -v{u}, -v{u}")
        E(f"v_cvt_pk_bf16_f32 v{w}, v{t}, v{t}")
        E(f"v_lshlrev_b32 v{w}, 16, v{w}")
        E(f"v_sub_f32 v{w}, v{t}, v{w}")
        E(f"v_cvt_pk_bf16_f32 v{XE + 2}, v{t}, v{w}")
        E(f"v_mov_b32 v{XE + 3}, 0")
        return it

    def xload(self, dst, vb, i, tag, extra=" sc1", srd="s[4:7]"):
        so, imm = kofs(i)
        self.a.vmem(f"buffer_load_dwordx4 {dst}, v{vb}, {srd}, {so} offen offset:{imm}{extra}", tag)

    def wq_dma_items(self, vb):
        a = self.a
        it = [lambda: a.e(f"s_mul_i32 s9, s{sW}, {22 * KB}\ns_mul_i32 s10, s{sH}, {87 * KB}\ns_add_u32 s10, s10, s9\ns_add_u32 s10, s10, {WQKV_P}\ns_mov_b32 m0, s9\nv_add_u32 v{vb}, s10, v{vL16}")]
        for i in range(22):
            so, imm = kofs(i)
            if i and (i & 3) == 0:
                it.append(lambda: a.e(f"s_add_u32 m0, m0, {4 * KB}\ns_nop 0"))
            it.append(lambda so=so, imm=imm: a.vmem(f"buffer_load_dwordx4 v{vb}, s[4:7], {so} offen offset:{imm} lds", 'wq'))
        return it

    def setup(self):
        a = self.a
        ws_prologue(a)
        a.e(f"""
        s_load_dwordx4 s[16:19], s[0:1], 56      ; b2, out
        s_load_dwordx2 s[20:21], s[0:1], 72      ; debug
        s_and_b32 s{sG}, s2, 7
        s_lshr_b32 s3, s2, 3                     ; idx
        s_and_b32 s{sH}, s3, 15
        """)
        for i in range(1, 7):
            a.e(f"s_movk_i32 s{sK[i]}, {i * 4 * KB}")
        a.e("s_waitcnt lgkmcnt(0)")
        for f in self.wq_dma_items(8):
            f()
        a.e(f"""
        s_lshr_b32 s9, s3, 4
        s_lshl_b32 s10, s{sG}, 1
        s_add_u32 s{sRB}, s10, s9
        s_lshl_b32 s{sRT}, s{sRB}, 2
        s_add_u32 s{sRT}, s{sRT}, s{sW}
        """)

    def setup2(self):
        a = self.a

        def flagaddr(dst, srt, base, sidx=None):
            a.e(f"s_lshr_b32 s9, s{srt}, 1\ns_lshl_b32 s9, s9, 8\ns_and_b32 s11, s{srt}, 1\ns_lshl_b32 s11, s11, 6\ns_add_u32 s9, s9, s11")
            if sidx is not None:
                a.e(f"s_lshl_b32 s11, s{sidx}, 2\ns_add_u32 s9, s9, s11")
            a.e(f"s_add_u32 s{dst}, s9, {base}")

        a.e(f"""
        s_lshr_b32 s3, s2, 3
        s_lshl_b32 s10, s{sG}, 1
        s_cmp_lt_u32 s3, 28
        s_cselect_b32 s{sROLE}, 1, 0
        s_cselect_b32 s14, {WS_SIZE}, 0
        s_mov_b32 s15, 0x20000
        s_mov_b32 s12, s4
        s_mov_b32 s13, s5
        s_mul_i32 s9, s3, 37
        s_lshr_b32 s9, s9, 8                     ; q = idx/7
        s_mul_i32 s11, s9, 7
        s_sub_u32 s11, s3, s11                   ; cg7
        s_lshl_b32 s61, s{sG}, 2
        s_add_u32 s9, s9, s61                    ; rb64
        s_lshl_b32 s9, s9, 1
        s_lshr_b32 s61, s{sW}, 1
        s_add_u32 s{sRTC}, s9, s61
        s_lshl_b32 s11, s11, 1
        s_and_b32 s61, s{sW}, 1
        s_add_u32 s{sNTC}, s11, s61
        s_cmp_ge_u32 s3, 14
        s_cselect_b32 s9, 1, 0
        s_cselect_b32 s11, 14, 0
        s_sub_u32 s{sCGD}, s3, s11
        s_add_u32 s9, s9, s10
        s_lshl_b32 s9, s9, 2
        s_add_u32 s{sRTD}, s9, s{sW}
        s_mov_b32 s{sMODE}, 0
        s_mov_b32 s{sBUD}, 100000
        s_getreg_b32 s{sXCC}, hwreg(HW_REG_XCC_ID)
        s_and_b32 s{sXCC}, s{sXCC}, 15
        s_mov_b32 s22, 256
        s_mov_b32 s23, 0x20000
        s_mov_b32 s{sHI}, 0
        s_mov_b32 s{sHI + 1}, -1
        s_lshl_b32 s9, s{sW}, 2
        s_lshl_b32 s{sMC}, 0x000f000f, s9
        s_mov_b32 s{sMC + 1}, 0
        s_mul_i32 s9, s{sW}, 7
        s_lshr_b32 s9, s9, 1
        s_lshl_b32 s{sME}, 0x000f000f, s9
        s_mov_b32 s{sME + 1}, 0
        s_lshl_b32 s9, s{sH}, 6
        s_add_u32 s9, s9, s{sRT}
        s_lshl_b32 s{sKVST}, s9, 12
        s_lshl_b32 s9, s{sH}, 2
        s_add_u32 s9, s9, s{sW}
        s_lshl_b32 s9, s9, 8
        s_add_u32 s{sFA}, s9, {FA}
        s_lshl_b32 s9, s{sRT}, 5
        s_lshl_b32 s11, s{sH}, 1
        s_add_u32 s9, s9, s11
        s_lshl_b32 s9, s9, 10
        s_add_u32 s{sOST}, s9, {OB}
        s_mul_i32 s9, s{sRTC}, 28
        s_lshl_b32 s11, s{sNTC}, 1
        s_add_u32 s9, s9, s11
        s_lshl_b32 s{sXO}, s9, 10
        s_mul_i32 s9, s{sRTC}, {14 * 256}
        s_lshr_b32 s11, s{sNTC}, 1
        s_lshl_b32 s11, s11, 9
        s_add_u32 s9, s9, s11
        s_and_b32 s11, s{sNTC}, 1
        s_lshl_b32 s11, s11, 2
        s_add_u32 s{sSO}, s9, s11
        s_mul_i32 s9, s{sRTD}, 112
        s_lshl_b32 s11, s{sCGD}, 3
        s_add_u32 s9, s9, s11
        s_lshl_b32 s9, s9, 10
        s_add_u32 s{sHST}, s9, {HB}
        s_lshr_b32 s9, s{sRTC}, 1
        s_lshl_b32 s9, s9, 8
        s_add_u32 s{sFBP}, s9, {FB}
        s_add_u32 s{sFDP}, s9, {FD}
        """)
        flagaddr(sFBW, sRT, FB, sH)
        flagaddr(sFO, sRTC, 0, sNTC)
        flagaddr(sFCP, sRTD, FC)
        flagaddr(sFDW, sRTD, FD, sCGD)
        flagaddr(sFEP, sRT, FE)
        for d in (1, 2, 3):
            a.e(f"s_xor_b32 s9, s{sW}, {d}\ns_mul_i32 s9, s9, {12 * KB}\ns_add_u32 s9, s9, {SCR + (d - 1) * 4 * KB}\nv_add_u32 v{vXW + d - 1}, s9, v{vL16}")
        a.e(f"s_mul_i32 s9, s{sW}, {12 * KB}\ns_add_u32 s9, s9, {SCR}\nv_add_u32 v{vXR}, s9, v{vL16}")
        a.e(f"""
        s_mul_i32 s9, s{sXCC}, s{sXCC}
        s_lshl_b32 s9, s9, 18
        s_lshl_b32 s11, s{sXCC}, 8
        s_add_u32 s9, s9, s11
        s_add_u32 s9, s9, 1
        s_cmp_eq_u32 s{sW}, 0
        s_cselect_b32 s9, s9, 0
        s_lshl_b32 s11, s{sG}, 2
        s_cmp_eq_u32 s{sW}, 0
        s_cselect_b32 s11, s11, 0x1000
        v_mov_b32 v{vTMP}, s9
        s_mov_b64 exec, 1
        """)
        a.vmem(f"buffer_atomic_add v{vTMP}, off, s[20:23], s11 sc1", 'misc')
        a.e(f"""
        s_mov_b64 exec, -1
        s_mov_b32 s60, s{sFEP}
        s_sub_u32 s60, s60, 0
        """)
        a.e(f"""
        s_mov_b32 s62, s18
        s_mov_b32 s63, s19
        s_mov_b32 s18, 896
        s_mov_b32 s19, 0x20000
        s_add_u32 s9, s{sXO}, {XIN}
        v_lshrrev_b32 v{vTMP}, 5, v0
        v_lshlrev_b32 v{vTMP}, 3, v{vTMP}
        s_lshl_b32 s11, s{sNTC}, 6
        """)
        a.vmem(f"buffer_load_dwordx4 {ar(A_RES)}, v{vL16}, s[12:15], s9 offen", 'misc')
        a.vmem(f"buffer_load_dwordx4 {ar(A_RES + 4)}, v{vL16}, s[12:15], s9 offen offset:1024", 'misc')
        for g in range(4):
            a.vmem(f"buffer_load_dwordx2 a[{A_B2 + 2 * g}:{A_B2 + 2 * g + 1}], v{vTMP}, s[16:19], s11 offen offset:{16 * g}", 'misc')
        a.e(f"s_mov_b32 s16, s62\ns_mov_b32 s17, s63\ns_mov_b32 s18, {S * D * 2}")

    def phaseA(self, l):
        a = self.a
        a.issued = {'wq'}
        X0, ACK, ACV, ACQ, RING, XE, vR, vQ = 16, 128, 144, 224, 176, 208, 212, 214
        KP, VP, QP = 160, 168, 32
        vX, vS, vB1, vB2 = 222, 223, 14, 15
        st = list(range(8, 16)) + list(range(216, 222))
        NR, LA, XL = 8, 6, 6

        def rd(i):
            if i >= 87:
                return
            off = i * KB
            base = vL16 if off < 65536 else vL16b
            a.lds(f"ds_read_b128 {vr(RING + 4 * (i % NR))}, v{base} offset:{off & 0xffff}", ('a', i))

        def xl(ks):
            if ks < 28:
                self.xload(vr(X0 + 4 * ks), vX, ks, ('x', ks))

        a.e(f"""
        s_mul_i32 s9, s{sRT}, {28 * KB}
        s_add_u32 s9, s9, {XIN}
        v_add_u32 v{vX}, s9, v{vL16}
        """)
        self.stamp()
        if l == 0:
            for ks in range(XL):
                xl(ks)
            a.e(f"v_add_u32 v{vL16b}, 0x10000, v{vL16}\nv_lshlrev_b32 v{vL4}, 2, v0")
            self.setup2()
            a.e(f"s_mul_i32 s9, s{sRT}, {14 * 256}\ns_add_u32 s9, s9, {STIN}\nv_lshl_add_u32 v{vS}, v0, 3, s9")
            a.wait(vm='wq')
            a.e("s_barrier")
            for i in range(LA):
                rd(i)
            self.stamp()
        else:
            a.e(f"s_mul_i32 s9, s{sRT}, {14 * 256}\ns_add_u32 s9, s9, {STIN}\nv_lshl_add_u32 v{vS}, v0, 3, s9")
            a.e("s_barrier")
            for i in range(LA):
                rd(i)
            self.poll(sFEP, "0x3fff", 0)
            self.stamp()
            for ks in range(XL):
                xl(ks)
        self.fill.extend(self.stats_load_items(vS, st))
        items = self.stats_items(st, XE, vR)
        c_ = (DH ** -0.5) * math.log2(math.e)
        E = lambda s: items.append(lambda s=s: a.e(s))
        E(f"v_mul_f32 v{vQ}, {hex(f2u(c_))}, v{vR}")
        E(f"v_and_b32 v{vB1}, 31, v0")
        E(f"s_mul_i32 s9, s{sW}, {12 * KB}")
        E(f"s_add_u32 s9, s9, {SCR + 11 * KB}")
        E(f"v_lshl_add_u32 v{vB1}, v{vB1}, 2, s9")
        items.append(lambda: a.lds(f"ds_write_b32 v{vB1}, v{vR}", 'rb'))
        E(f"v_lshrrev_b32 v{vB2}, 5, v0")
        E(f"v_lshl_add_u32 v{vB2}, v{vB2}, 4, s9")
        for ks in range(29):
            if ks == 14:
                self.drain_fill()
                self.fill.extend(items)
            if ks == 28:
                self.drain_fill()
                a.e("s_nop 1")
            for t in range(2):
                i = ks * 2 + t
                if t == 0:
                    if ks < 28:
                        a.wait(vm=[('x', ks)], lg=[('a', i + 1)])
                    else:
                        a.wait(lg=[('a', i + 1)])
                xb = X0 + 4 * ks if ks < 28 else XE
                A, B = vr(RING + 4 * (i % NR)), vr(xb)
                if t == 1:
                    A, B = B, A
                acc = vr(ACK if t == 0 else ACV, 16)
                a.e(f"{MF} {acc}, {A}, {B}, " + ("0" if ks == 0 else acc))
                if t == 0:
                    xl(ks + XL)
                    if ks >= 14:
                        self.pop(1)
                elif ks >= 14:
                    self.pop(2)
                elif ks >= 2:
                    self.pop(1)
                rd(i + LA)
        self.stamp()
        RV = 240
        it = []
        E = lambda s: it.append(lambda s=s: a.e(s))
        for g in range(4):
            it.append(lambda g=g: a.lds(f"ds_read_b128 {vr(RV + 4 * g)}, v{vB2} offset:{32 * g}", 'rv'))
        E(f"s_add_u32 s9, s{sKVST}, {KVB + l * KVSTRIDE}\ns_nop 3")
        for i in range(16):
            E(f"v_mul_f32 v{ACK + i}, v{ACK + i}, v{vR}")
        for i in range(8):
            E(f"v_cvt_pk_bf16_f32 v{KP + i}, v{ACK + 2 * i}, v{ACK + 2 * i + 1}")
        it.append(lambda: a.vmem(f"buffer_store_dwordx4 {vr(KP)}, v{vL16}, s[4:7], s9 offen sc1", 'kv'))
        it.append(lambda: a.wait(lg='rv'))
        for i in range(16):
            E(f"v_mul_f32 v{ACV + i}, v{ACV + i}, v{RV + i}")
            if i == 3:
                it.append(lambda: a.vmem(f"buffer_store_dwordx4 {vr(KP + 4)}, v{vL16}, s[4:7], s9 offen offset:1024 sc1", 'kv'))
        for i in range(8):
            E(f"v_cvt_pk_bf16_f32 v{VP + i}, v{ACV + 2 * i}, v{ACV + 2 * i + 1}")
            if i == 3:
                it.append(lambda: a.vmem(f"buffer_store_dwordx4 {vr(VP)}, v{vL16}, s[4:7], s9 offen offset:2048 sc1", 'kv'))
        it.append(lambda: a.vmem(f"buffer_store_dwordx4 {vr(VP + 4)}, v{vL16}, s[4:7], s9 offen offset:3072 sc1", 'kv'))
        self.fill.extend(it)
        for ks in range(29):
            i = 58 + ks
            a.wait(lg=[('a', i)])
            xb = X0 + 4 * ks if ks < 28 else XE
            acc = vr(ACQ, 16)
            a.e(f"{MF} {acc}, {vr(RING + 4 * (i % NR))}, {vr(xb)}, " + ("0" if ks == 0 else acc))
            rd(i + LA)
            self.pop(4)
        self.drain_fill()
        a.e(f"v_mov_b32 v{vTMP}, 1\ns_mov_b64 exec, 1")
        a.wait_all(vm=True)
        a.vmem(f"buffer_atomic_add v{vTMP}, off, s[4:7], s{sFA} offset:{128 * l} sc1", 'atom')
        a.e("s_mov_b64 exec, -1\ns_nop 6")
        self.stamp()
        for i in range(8):
            r = ACQ + 2 * i
            a.e(f"v_pk_mul_f32 v[{r}:{r + 1}], v[{r}:{r + 1}], v[{vQ}:{vQ + 1}] op_sel_hi:[1,0]")
        for i in range(8):
            a.e(f"v_cvt_pk_bf16_f32 v{QP + i}, v{ACQ + 2 * i}, v{ACQ + 2 * i + 1}")
            if i == 3:
                a.e(f"ds_write_b128 v{vXR}, {vr(QP)} offset:{8 * KB}")
        a.e(f"ds_write_b128 v{vXR}, {vr(QP + 4)} offset:{9 * KB}")
        a.e("s_waitcnt lgkmcnt(0)\ns_barrier")
        a.lg = []

    def phaseB(self, l):
        a = self.a
        a.issued = set()
        Q, O, S0, E, P0, KV, M, T = 8, 40, 104, 136, 144, 160, 224, 228
        vC, vKV, vW1, vW2a, vW2b, vWa, vWb, vD = 240, 241, 242, 243, 244, 245, 246, 250
        vT128, vT16, vTF, vT4 = 251, 252, 253, 254

        def Sb(s): return S0 + 16 * (s & 1)
        def Pb(s): return P0 + 8 * (s & 1)
        def Kr(t): return KV + 16 * (t & 3)
        def Vr(t): return KV + 16 * (t & 3) + 8

        for j in range(3):
            d = j ^ 3
            a.lds(f"ds_read_b128 {vr(Q + 8 * j)}, v{vXW + d - 1} offset:{(8 - 4 * (d - 1)) * KB}", ('q', j))
            a.lds(f"ds_read_b128 {vr(Q + 8 * j + 4)}, v{vXW + d - 1} offset:{(9 - 4 * (d - 1)) * KB}", ('q', j))
        a.e(f"v_mov_b32 v{vTMP}, 0\ns_mov_b64 exec, 1")
        a.e(f"buffer_atomic_add v{vTMP}, off, s[4:7], s{sFA} offset:{128 * l} sc0 sc1")
        a.e("s_mov_b64 exec, -1\ns_mov_b32 s61, 0")

        def smf(dst, t, j):
            a.e(f"{MF} {vr(dst, 16)}, {vr(Kr(t))}, {vr(Q + 8 * j)}, 0")
            a.e(f"{MF} {vr(dst, 16)}, {vr(Kr(t) + 4)}, {vr(Q + 8 * j + 4)}, {vr(dst, 16)}")

        def maxtree(src, dst):
            a.e(f"v_max3_f32 v{dst}, v{src}, v{src + 1}, v{src + 2}")
            for i in range(3, 15, 2):
                a.e(f"v_max3_f32 v{dst}, v{dst}, v{src + i}, v{src + i + 1}")
            a.e(f"v_max_f32 v{dst}, v{dst}, v{src + 15}")

        smf(Sb(0), 0, 3)
        a.wait(lg=[('q', 0)])
        smf(Sb(1), 0, 0)
        a.e(f"""
        s_lshl_b32 s9, s{sH}, 6
        s_add_u32 s9, s9, s{sW}
        s_lshl_b32 s9, s9, 12
        s_add_u32 s9, s9, {KVB + l * KVSTRIDE}
        v_add_u32 v{vKV}, s9, v{vL16}
        s_mul_i32 s9, s{sCGD}, {116 * KB}
        s_add_u32 s9, s9, {W1_P}
        s_add_u32 s62, s9, {112 * KB}
        s_mul_i32 s63, s{sW}, {28 * KB}
        """)
        maxtree(Sb(0), M + 3)
        a.wait(lg=[('q', 1)])
        smf(Sb(0), 0, 1)
        a.e(f"s_add_u32 s9, s9, s63\nv_add_u32 v{vW1}, s9, v{vL16}")
        maxtree(Sb(1), M + 0)
        a.wait(lg=[('q', 2)])
        smf(Sb(1), 0, 2)
        a.e("s_nop 0")
        maxtree(Sb(0), M + 1)
        a.e(f"""
        s_lshl_b32 s9, s{sNTC}, 15
        s_lshl_b32 s10, s{sW}, 13
        s_add_u32 s10, s10, {WO_P}
        """)
        maxtree(Sb(1), M + 2)
        a.e("s_mov_b32 exec_lo, 0")
        for j in range(4):
            a.e(f"v_cvt_pk_bf16_f32 v{Q + 8 * j + 6}, -v{M + j}, 0")
        for j in range(4):
            a.e(f"v_lshlrev_b32 v{M + j}, 16, v{Q + 8 * j + 6}")
        a.e(f"""
        s_mov_b32 exec_lo, -1
        s_add_u32 s11, s9, s10
        v_add_u32 v{vWa}, s11, v{vL16}
        s_xor_b32 s9, s9, {1 << 15}
        s_add_u32 s11, s9, s10
        v_add_u32 v{vWb}, s11, v{vL16}
        v_lshlrev_b32 v{vT128}, 7, v0
        v_and_b32 v{vT16}, 0x780, v{vT128}
        v_and_b32 v{vT4}, 0x180, v{vT128}
        v_bfe_u32 v{vTF}, v0, 2, 2
        v_lshlrev_b32 v{vTF}, 13, v{vTF}
        v_lshl_add_u32 v{vTF}, v{vT4}, 1, v{vTF}
        """)
        if l == 0:
            a.e(f"""
            s_mul_i32 s9, s{sNTC}, {112 * KB}
            s_add_u32 s10, s63, {W2_P}
            s_add_u32 s9, s9, s10
            v_add_u32 v{vW2a}, s9, v{vL16}
            s_xor_b32 s9, s{sNTC}, 1
            s_mul_i32 s9, s9, {112 * KB}
            s_add_u32 s9, s9, s10
            v_add_u32 v{vW2b}, s9, v{vL16}
            """)
        self.stamp()
        lp, lck, ld = self.lab("kvpoll"), self.lab("kvchk"), self.lab("kvdone")
        a.e(f"s_barrier\ns_mov_b64 exec, 1\ns_branch {lck}")
        a.label(lp)
        a.e(f"v_mov_b32 v{vTMP}, 0\nbuffer_atomic_add v{vTMP}, off, s[4:7], s{sFA} offset:{128 * l} sc0 sc1")
        a.label(lck)
        a.e(f"""
        s_waitcnt vmcnt(0)
        v_cmp_gt_u32 vcc, 16, v{vTMP}
        s_cbranch_vccz {ld}
        s_sub_u32 s{sBUD}, s{sBUD}, 1
        s_cmp_gt_i32 s{sBUD}, 0
        s_cbranch_scc1 {lp}
        s_mov_b32 s{sBUD}, 0
        """)
        a.label(ld)
        a.e("s_mov_b64 exec, -1")
        a.vm = []
        self.stamp()

        sT = [9, 10]

        def adv(t):
            d, s_ = sT[t & 1], sT[(t - 1) & 1]
            return [lambda: a.e(f"s_add_u32 s{d}, s{s_}, {16 * KB}"), lambda: a.e(f"s_and_b32 s{d}, s{d}, 0x3c000")]

        def kvld(t, i):
            return lambda: a.vmem(f"buffer_load_dwordx4 {vr(KV + 16 * (t & 3) + 4 * i)}, v{vKV}, s[4:7], s{sT[t & 1]} offen offset:{i * KB} sc1", ('k' if i < 2 else 'v', t))

        def wold(u, i):
            return lambda: self.xload(vr(KV + 16 * u + 4 * i), vWa if i < 2 else vWb, 2 * u + (i & 1), 'wo', "", "s[12:15]")

        lrestart = self.lab("attn_restart")
        a.label(lrestart)
        a.e(f"s_lshl_b32 s{sT[0]}, s{sRB}, 14\ns_mov_b32 m0, s63")
        for f in adv(1):
            f()
        for i in range(4):
            kvld(1, i)()
        smf(Sb(0), 0, 0)
        for f in adv(2):
            f()
        kvld(2, 0)()
        kvld(2, 1)()
        a.e("s_nop 6")

        slots = [[] for _ in range(260)]
        slots[0].append(kvld(2, 2))
        slots[1].append(kvld(2, 3))
        slots[1].extend(adv(3))
        for i in range(4):
            slots[4 + i].append(kvld(3, i))
        for t in range(16):
            u = t + 4
            n = 4 * (4 * t + 2)
            if u < 16:
                slots[n - 1].append(adv(u)[0])
                slots[n].append(adv(u)[1])
                slots[n + 1].append(kvld(u, 0))
                slots[n + 3].append(kvld(u, 1))
                slots[4 * (4 * t + 4) + 3].append(kvld(u, 2))
                slots[4 * (4 * t + 5) + 1].append(kvld(u, 3))
            else:
                slots[n + 1].append(wold(t & 3, 0))
                slots[n + 3].append(wold(t & 3, 1))
                if t < 15:
                    slots[4 * (4 * t + 4) + 3].append(wold(t & 3, 2))
                    slots[4 * (4 * t + 5) + 1].append(wold(t & 3, 3))
            if t >= 1:
                slots[4 * (4 * t - 1) - 1].append(lambda t=t: a.wait(vm=[('k', t)]))
                slots[4 * (4 * t + 1) + 1].append(lambda t=t: a.wait(vm=[('v', t)]))
        pf = []
        for i in range(0 if OPT("NOW1") else 28):
            so, imm = kofs(i)
            if i and (i & 3) == 0:
                pf.append(('s', lambda: a.e(f"s_add_u32 m0, m0, {4 * KB}")))
            pf.append(('v', lambda so=so, imm=imm: a.vmem(f"buffer_load_dwordx4 v{vW1}, s[12:15], {so} offen offset:{imm} lds", 'pf')))
        if l == 0:
            for j in range(4):
                pf.append(('v', lambda j=j: a.vmem(f"buffer_load_dwordx4 {ar(A_W1X + 4 * j)}, v{vL16}, s[12:15], s62 offen offset:{j * KB}", 'pf')))
            for b in range(0 if OPT("NOW2") else 2):
                for i in range(28):
                    pf.append(('v', lambda b=b, i=i: self.xload(ar(A_W2 + (b * 28 + i) * 4), (vW2a, vW2b)[b], i, 'pf', "", "s[12:15]")))
        tch = []

        def touch(setup, va, srd, so="s11", imm=0):
            if setup:
                tch.append(('s', lambda: a.e(setup)))
            tch.append(('v', lambda: a.vmem(f"buffer_load_dword v{vD}, v{va}, {srd}, {so} offen offset:{imm}", 'pf')))
        if not OPT("NOTOUCH"):
            touch(None, vT16, "s[4:7]", f"s{sOST}")
            touch(f"s_lshl_b32 s11, s{sG}, 10", vTF, "s[4:7]", imm=128 * l)
            tch.insert(len(tch) - 1, ('s', lambda: a.e(f"s_add_u32 s11, s11, {FLG}")))
            touch(f"s_add_u32 s11, s{sXO}, {XMID}", vT16, "s[12:15]")
            touch(f"s_add_u32 s11, s{sSO}, {STMID}", vT4, "s[12:15]")
            touch(None, vT128, "s[12:15]", f"s{sHST}")
            if l == 0:
                touch(f"s_add_u32 s11, s{sXO}, {XIN}", vT16, "s[12:15]")
                touch(f"s_add_u32 s11, s{sSO}, {STIN}", vT4, "s[12:15]")
        if l == 0:
            tch.append(('s', lambda: a.e(f"s_lshl_b32 s11, s{sG}, 2")))
            tch.append(('v', lambda: a.vmem(f"buffer_load_dword v{vC}, off, s[20:23], s11 sc1", 'cen')))

        def place(items, n0, n1):
            free = [n for n in range(n0, n1) if not slots[n]]
            assert len(free) >= len(items), (len(free), len(items))
            step = len(free) / len(items) if items else 1
            for i, (kind, f) in enumerate(items):
                slots[free[int(i * step)]].append(f)
        TS = OPT("TSTART", 176)
        place(tch, TS, OPT("TEND", 232))
        place(pf, OPT("PFSTART", 24), 240 if l == 0 else OPT("PFEND", 160))

        def pv(s):
            t, j = s >> 2, s & 3
            acc = vr(O + 16 * j, 16)
            return [f"{MF} {acc}, {vr(Vr(t))}, {vr(Pb(s))}, " + ("0" if t == 0 else acc),
                    f"{MF} {acc}, {vr(Vr(t) + 4)}, {vr(Pb(s) + 4)}, {acc}"]

        def owrite(j, qd):
            return lambda: a.e(f"ds_write_b128 v{vXW + (j ^ 3) - 1}, {vr(O + 16 * j + 4 * qd)} offset:{qd * KB}")
        for j in range(2):
            n = 4 * (62 + j)
            slots[n + 1].append(owrite(j, 0))
            slots[n + 2].append(owrite(j, 1))
            slots[n + 2].append(lambda j=j: a.e(f"v_cndmask_b32 v{O + 16 * j + 13}, v{O + 16 * j + 13}, v{M + j}, s[{sHI}:{sHI + 1}]"))
            slots[n + 3].append(owrite(j, 2))
            slots[n + 4].append(owrite(j, 3))

        for s in range(64):
            if (s & 3) == 0 and OPT("BST"):
                self.stamp(True)
            sb, pb, nb = Sb(s), Pb(s), Sb(s + 1)
            mf = [None] * 4
            if s + 1 < 64:
                t1, j1 = (s + 1) >> 2, (s + 1) & 3
                mf[0] = f"{MF} {vr(nb, 16)}, {vr(Kr(t1))}, {vr(Q + 8 * j1)}, 0"
                mf[1] = f"{MF} {vr(nb, 16)}, {vr(Kr(t1) + 4)}, {vr(Q + 8 * j1 + 4)}, {vr(nb, 16)}"
            if s >= 1:
                mf[2], mf[3] = pv(s - 1)
            for g in range(4):
                if mf[g]:
                    a.e(mf[g])
                for f in slots[4 * s + g]:
                    f()
                if g == 0 and s >= 1:
                    a.e(f"v_cvt_pk_bf16_f32 v{Pb(s - 1) + 7}, v{E + 6}, v{E + 7}")
                e = E + 4 * (g & 1)
                for i in range(4):
                    a.e(f"v_exp_f32 v{e + i}, v{sb + 4 * g + i}")
                    if i == 0 and g > 0:
                        pe = E + 4 * ((g - 1) & 1)
                        a.e(f"v_cvt_pk_bf16_f32 v{pb + 2 * (g - 1) + 1}, v{pe + 2}, v{pe + 3}")
                    if i == 2:
                        a.e(f"v_cvt_pk_bf16_f32 v{pb + 2 * g}, v{e}, v{e + 1}")
        for f in slots[256]:
            f()
        a.e(f"v_cvt_pk_bf16_f32 v{Pb(63) + 7}, v{E + 6}, v{E + 7}")
        p63 = pv(63)
        a.e(p63[0])
        a.e(f"v_mov_b32 v{T}, {hex(f2u(2.0 ** 30))}")
        a.e(p63[1])
        self.stamp(True)
        lmerge, lfb = self.lab("attn_merge"), self.lab("attn_fb")
        a.e(f"""
        v_cmp_nle_f32 s[62:63], v{O + 12}, v{T}
        v_cmp_nle_f32 s[10:11], v{O + 28}, v{T}
        v_cndmask_b32 v{O + 32 + 13}, v{O + 32 + 13}, v{M + 2}, s[{sHI}:{sHI + 1}]
        v_cmp_nle_f32 vcc, v{O + 44}, v{T}
        """)
        for qd in range(4):
            owrite(2, qd)()
        wold(3, 2)()
        wold(3, 3)()
        a.e(f"""
        s_or_b32 s63, s63, s11
        s_or_b32 s63, s63, vcc_hi
        v_cmp_nle_f32 vcc, v{O + 60}, v{T}
        s_or_b32 s63, s63, vcc_hi
        s_cmp_lg_u32 s63, 0
        s_cbranch_scc1 {lfb}
        """)
        a.label(lmerge)

        def fb_tail():
            a.label(lfb)
            a.e(f"s_cmp_lg_u32 s61, 0\ns_cbranch_scc1 {lmerge}")
            a.e("s_mov_b32 s61, 1\ns_waitcnt vmcnt(0) lgkmcnt(0)\ns_mov_b32 exec_lo, 0")
            for j in range(4):
                a.e(f"v_mov_b32 v{Q + 8 * j + 6}, 0")
            a.e("s_mov_b32 exec_lo, -1")
            for j in range(4):
                a.e(f"v_mov_b32 v{M + j}, 0xff800000")
            a.e("s_mov_b32 s9, 0\ns_mov_b32 s10, 16")
            ll = self.lab("attn_fbl")
            a.label(ll)
            a.e(f"buffer_load_dwordx4 {vr(Kr(0))}, v{vKV}, s[4:7], s9 offen sc1")
            a.e(f"buffer_load_dwordx4 {vr(Kr(0) + 4)}, v{vKV}, s[4:7], s9 offen offset:1024 sc1")
            a.e("s_waitcnt vmcnt(0)")
            for j in range(4):
                smf(Sb(0), 0, j)
                a.e("s_nop 7\ns_nop 3")
                for i in range(0, 16, 2):
                    a.e(f"v_max3_f32 v{M + j}, v{M + j}, v{Sb(0) + i}, v{Sb(0) + i + 1}")
            a.e(f"s_add_u32 s9, s9, {16 * KB}\ns_sub_u32 s10, s10, 1\ns_cmp_lg_u32 s10, 0\ns_cbranch_scc1 {ll}")
            for j in range(4):
                a.e(f"""
                v_mov_b32 v{T}, v{M + j}
                s_nop 1
                v_permlane32_swap_b32 v{M + j}, v{T}
                v_max_f32 v{M + j}, v{M + j}, v{T}
                s_mov_b32 exec_lo, 0
                v_sub_f32 v{M + j}, 0, v{M + j}
                v_cvt_pk_bf16_f32 v{T}, v{M + j}, v{M + j}
                v_lshlrev_b32 v{T}, 16, v{T}
                v_sub_f32 v{T + 1}, v{M + j}, v{T}
                v_cvt_pk_bf16_f32 v{Q + 8 * j + 6}, v{M + j}, v{T + 1}
                v_and_b32 v{T + 2}, 0xffff0000, v{Q + 8 * j + 6}
                v_sub_f32 v{T + 1}, v{T + 1}, v{T + 2}
                v_cvt_pk_bf16_f32 v{Q + 8 * j + 7}, v{T + 1}, 0
                v_lshlrev_b32 v{T + 1}, 16, v{Q + 8 * j + 7}
                v_add_f32 v{T + 2}, v{T + 2}, v{T + 1}
                v_add_f32 v{M + j}, v{T}, v{T + 2}
                s_mov_b32 exec_lo, -1
                """)
            a.e(f"s_lshl_b32 s9, s{sRB}, 14")
            for i in range(4):
                a.e(f"buffer_load_dwordx4 {vr(KV + 4 * i)}, v{vKV}, s[4:7], s9 offen offset:{i * KB} sc1")
            a.e(f"""
            s_mul_i32 s62, s{sCGD}, {116 * KB}
            s_add_u32 s62, s62, {W1_P + 112 * KB}
            s_mul_i32 s63, s{sW}, {28 * KB}
            s_waitcnt vmcnt(0)
            s_branch {lrestart}
            """)
        self.k.tail.append(fb_tail)

        if l == 0:
            lcp, lcd = self.lab("cen"), self.lab("cendone")
            a.wait(vm='cen')
            a.label(lcp)
            a.e(f"""
            v_readfirstlane_b32 s9, v{vC}
            s_and_b32 s10, s9, 0xff
            s_cmp_ge_u32 s10, 32
            s_cbranch_scc1 {lcd}
            s_lshl_b32 s11, s{sG}, 2
            buffer_load_dword v{vC}, off, s[20:23], s11 sc1
            s_waitcnt vmcnt(0)
            s_sub_u32 s{sBUD}, s{sBUD}, 1
            s_cmp_gt_i32 s{sBUD}, 0
            s_cbranch_scc1 {lcp}
            s_mov_b32 s{sBUD}, 0
            """)
            a.label(lcd)
            a.e(f"""
            s_mul_i32 s10, s{sXCC}, s{sXCC}
            s_lshl_b32 s10, s10, 23
            s_lshl_b32 s11, s{sXCC}, 13
            s_add_u32 s10, s10, s11
            s_add_u32 s10, s10, 32
            s_cmp_lg_u32 s9, s10
            s_cselect_b32 s{sMODE}, 1, {FORCE_SLOW}
            """)
        a.e(f"v_mov_b32 v{T + 7}, v{M + 3}\ns_waitcnt lgkmcnt(0)\ns_barrier")
        a.lg = []
        self.stamp()
        for j in range(3):
            a.lds(f"ds_read_b128 {vr(O + 16 * j + 12)}, v{vXR} offset:{(j * 4 + 3) * KB}", 'm')
        for j in range(3):
            for qd in range(3):
                a.lds(f"ds_read_b128 {vr(O + 16 * j + 4 * qd)}, v{vXR} offset:{(j * 4 + qd) * KB}", ('o', j))
        a.e(f"v_permlane32_swap_b32 v{T + 7}, v{M + 3}")
        a.wait(lg='m')
        for j in range(3):
            a.e(f"v_mov_b32 v{M + j}, v{O + 16 * j + 13}\nv_mov_b32 v{T + 4 + j}, v{O + 16 * j + 13}")
        a.e("s_nop 0")
        for j in range(3):
            a.e(f"v_permlane32_swap_b32 v{T + 4 + j}, v{M + j}")
        a.e(f"""
        v_min3_f32 v{T + 1}, v{M}, v{M + 1}, v{M + 3}
        v_min_f32 v{T + 1}, v{T + 1}, v{M + 2}
        """)
        FR = 104
        for j in range(4):
            a.e(f"v_sub_f32 v{M + j}, v{T + 1}, v{M + j}")
        for j in (3, 0, 1, 2):
            a.e(f"v_exp_f32 v{FR + 2 * j}, v{M + j}")
        OW = O + 48
        order = [6, 7, 0, 1, 2, 3, 4, 5]
        r = OW + 12
        a.e(f"v_mul_f32 v{T}, v{r}, v{FR + 6}")
        for j in range(3):
            a.e(f"v_fma_f32 v{T}, v{O + 16 * j + 12}, v{FR + 2 * j}, v{T}")
        a.e(f"v_mov_b32 v{T + 1}, v{T}")
        a.e(f"v_pk_mul_f32 v[{OW}:{OW + 1}], v[{OW}:{OW + 1}], v[{FR + 6}:{FR + 7}] op_sel_hi:[1,0]")
        a.e(f"v_pk_mul_f32 v[{OW + 2}:{OW + 3}], v[{OW + 2}:{OW + 3}], v[{FR + 6}:{FR + 7}] op_sel_hi:[1,0]")
        a.e(f"v_permlane32_swap_b32 v{T}, v{T + 1}")
        a.e(f"v_rcp_f32 v{T + 2}, v{T + 1}")
        for i in range(2, 8):
            r = OW + 2 * i
            a.e(f"v_pk_mul_f32 v[{r}:{r + 1}], v[{r}:{r + 1}], v[{FR + 6}:{FR + 7}] op_sel_hi:[1,0]")
        for j in range(3):
            a.wait(lg=[('o', j)])
            for i in range(8):
                r = OW + 2 * i
                s = O + 16 * j + 2 * i
                a.e(f"v_pk_fma_f32 v[{r}:{r + 1}], v[{s}:{s + 1}], v[{FR + 2 * j}:{FR + 2 * j + 1}], v[{r}:{r + 1}] op_sel_hi:[1,0,1]")
        for i in range(8):
            r = OW + 2 * i
            a.e(f"v_pk_mul_f32 v[{r}:{r + 1}], v[{r}:{r + 1}], v[{T + 2}:{T + 3}] op_sel_hi:[1,0]")
            if i == 3:
                for q in range(4):
                    a.e(f"v_cvt_pk_bf16_f32 v{P0 + q}, v{OW + 2 * q}, v{OW + 2 * q + 1}")
                a.e(f"buffer_store_dwordx4 {vr(P0)}, v{vL16}, s[4:7], s{sOST} offen")
        for q in range(4, 8):
            a.e(f"v_cvt_pk_bf16_f32 v{P0 + q}, v{OW + 2 * q}, v{OW + 2 * q + 1}")
        a.e(f"""
        v_cndmask_b32 v{P0 + 6}, v{P0 + 6}, 0, s[{sHI}:{sHI + 1}]
        v_cndmask_b32 v{P0 + 7}, v{P0 + 7}, 0, s[{sHI}:{sHI + 1}]
        buffer_store_dwordx4 {vr(P0 + 4)}, v{vL16}, s[4:7], s{sOST} offen offset:1024
        """)
        self.publish(sFBW, l)
        a.e("s_barrier")
        self.stamp()

    def acc_init(self, ACC, U, bias):
        a = self.a
        for i in range(8):
            a.e(f"v_accvgpr_read_b32 v{U + i}, a{A_RES + i}")
        for i in range(8):
            a.e(f"v_lshlrev_b32 v{ACC + 2 * i}, 16, v{U + i}")
            a.e(f"v_and_b32 v{ACC + 2 * i + 1}, 0xffff0000, v{U + i}")
        if bias:
            for i in range(8):
                a.e(f"v_accvgpr_read_b32 v{U + i}, a{A_B2 + i}")
            for i in range(8):
                a.e(f"v_lshlrev_b32 v{U + 8 + 2 * i}, 16, v{U + i}")
                a.e(f"v_and_b32 v{U + 8 + 2 * i + 1}, 0xffff0000, v{U + i}")
            for i in range(8):
                r = ACC + 2 * i
                a.e(f"v_pk_add_f32 v[{r}:{r + 1}], v[{r}:{r + 1}], v[{U + 8 + 2 * i}:{U + 8 + 2 * i + 1}]")

    def ksplit_loop(self, ACC, nks, R, wreg, xreg, hook):
        a = self.a
        n = 0

        def mm(ks, j):
            x, b = j >> 1, j & 1
            a.wait(vm=[('x', ks, x)])
            acc = vr(ACC + 16 * j, 16)
            a.e(f"{MF} {acc}, {wreg(ks, b)}, {vr(xreg(ks, x))}, " + ("0" if (ks == 0 and j != 0) else acc))
        for ks in range(nks - R):
            for j in range(4):
                mm(ks, j)
                hook(n)
                n += 1
        prev = None
        for j in (1, 3, 2, 0):
            for q, ks in enumerate(range(nks - R, nks)):
                mm(ks, j)
                hook(n)
                n += 1
                if prev is not None:
                    if q < 2:
                        a.e("s_nop 4")
                    if q == 1 and R == 2 or q == 2:
                        pass
                    if q >= 1 and q - 1 < 2:
                        pass
                if prev is not None and q >= 2:
                    for qd in ([0, 1] if q == 2 else [2, 3] if q == 3 else []):
                        a.e(f"ds_write_b128 v{vXW + prev - 1}, {vr(ACC + 16 * prev + 4 * qd)} offset:{qd * KB}")
            prev = j

    def reduce_tail(self, ACC, U, xout, stout, flag, l, final):
        a = self.a
        a.e("s_waitcnt lgkmcnt(0)\ns_barrier")
        a.lg = []
        for j in range(3):
            for qd in range(4):
                a.lds(f"ds_read_b128 {vr(ACC + 16 * (j + 1) + 4 * qd)}, v{vXR} offset:{(j * 4 + qd) * KB}", ('o', j))
        if final:
            a.e(f"""
            v_and_b32 v8, 31, v0
            v_mul_u32_u24 v8, 896, v8
            v_lshrrev_b32 v9, 5, v0
            v_lshl_add_u32 v8, v9, 4, v8
            s_mul_i32 s9, s{sRTC}, {32 * 896}
            s_lshl_b32 s10, s{sNTC}, 6
            s_add_u32 s9, s9, s10
            """)
        else:
            a.e(f"""
            v_mov_b32 v9, 0x3f803f80
            v_mov_b32 v10, 0
            v_mov_b32 v11, 0
            v_lshlrev_b32 v12, 3, v0
            s_add_u32 s9, s{sXO}, {xout}
            s_add_u32 s10, s{sSO}, {stout}
            s_add_u32 s11, s{sFO}, {flag}
            """)
        for j in range(3):
            a.wait(lg=[('o', j)])
            for i in range(8):
                r = ACC + 2 * i
                s = ACC + 16 * (j + 1) + 2 * i
                a.e(f"v_pk_add_f32 v[{r}:{r + 1}], v[{r}:{r + 1}], v[{s}:{s + 1}]")
        for i in range(8):
            a.e(f"v_cvt_pk_bf16_f32 v{U + i}, v{ACC + 2 * i}, v{ACC + 2 * i + 1}")
            if i == 3 and not final:
                a.e(f"buffer_store_dwordx4 {vr(U)}, v{vL16}, s[4:7], s9 offen")
        if final:
            a.e("s_nop 0")
            for p in range(2):
                a.e(f"v_permlane32_swap_b32 v{U + 4 * p}, v{U + 4 * p + 2}")
                a.e(f"v_permlane32_swap_b32 v{U + 4 * p + 1}, v{U + 4 * p + 3}")
                a.e(f"buffer_store_dwordx4 {vr(U + 4 * p)}, v8, s[16:19], s9 offen offset:{32 * p}")
            return
        a.e(f"buffer_store_dwordx4 {vr(U + 4)}, v{vL16}, s[4:7], s9 offen offset:1024")
        for i in range(8):
            a.e(f"v_dot2_f32_bf16 v10, v{U + i}, v9, v10")
            a.e(f"v_dot2_f32_bf16 v11, v{U + i}, v{U + i}, v11")
        for i in range(3):
            a.e(f"v_accvgpr_write_b32 a{A_RES + i}, v{U + i}")
        a.e(f"""
        v_permlane32_swap_b32 v10, v11
        v_add_f32 v10, v10, v11
        buffer_store_dword v10, v12, s[4:7], s10 offen
        """)
        for i in range(3, 8):
            a.e(f"v_accvgpr_write_b32 a{A_RES + i}, v{U + i}")
        self.publish(11, l)

    def phaseC(self, l):
        a = self.a
        a.issued = set()
        ACC, XO, KV, vX0, vX1 = 16, 80, 160, 8, 9
        a.e(f"""
        s_lshl_b32 s9, s{sRTC}, 15
        s_lshl_b32 s10, s{sW}, 13
        s_add_u32 s10, s10, {OB}
        s_add_u32 s11, s9, s10
        v_add_u32 v{vX0}, s11, v{vL16}
        s_xor_b32 s9, s9, {1 << 15}
        s_add_u32 s11, s9, s10
        v_add_u32 v{vX1}, s11, v{vL16}
        """)
        self.acc_init(ACC, XO, False)
        self.poll(sFBP, f"s[{sMC}:{sMC + 1}]", l)
        self.stamp()
        q = [(ks, x) for ks in range(8) for x in range(2)]

        def issue():
            if q:
                ks, x = q.pop(0)
                self.xload(vr(XO + 8 * ks + 4 * x), (vX0, vX1)[x], ks, ('x', ks, x))
        for _ in range(OPT("CPRE", 8)):
            issue()
        self.ksplit_loop(ACC, 8, 4, lambda ks, b: vr(KV + 16 * (ks >> 1) + 4 * (ks & 1) + 8 * b),
                         lambda ks, x: XO + 8 * ks + 4 * x, lambda n: issue() if (n & 1) == 0 else None)
        self.reduce_tail(ACC, XO, XMID, STMID, FC, l, False)
        self.stamp()

    def phaseD(self, l):
        a = self.a
        a.issued = set()
        X0, ACC, RING, XE, vR, vX, vS = 16, 128, 192, 240, 244, 252, 253
        st = list(range(8, 16)) + list(range(246, 252))
        a.e(f"""
        s_mul_i32 s9, s{sRTD}, {28 * KB}
        s_add_u32 s9, s9, {XMID}
        v_add_u32 v{vX}, s9, v{vL16}
        s_mul_i32 s9, s{sRTD}, {14 * 256}
        s_add_u32 s9, s9, {STMID}
        v_lshl_add_u32 v{vS}, v0, 3, s9
        """)
        NR, LA, XL, R = 12, 8, 5, OPT("DR", 8)
        order = [(ks, t) for ks in range(28 - R) for t in range(4)]
        for t in range(4):
            order += [(ks, t) for ks in range(28 - R, 29)]
        lorder = [o for o in order if o[0] < 28]
        lidx = {o: i for i, o in enumerate(lorder)}

        def rd(i):
            if i >= len(lorder):
                return
            ks, t = lorder[i]
            off = (ks * 4 + t) * KB
            base = vL16 if off < 65536 else vL16b
            a.lds(f"ds_read_b128 {vr(RING + 4 * (i % NR))}, v{base} offset:{off & 0xffff}", ('a', i))

        for i in range(LA):
            rd(i)
        self.poll(sFCP, "0x3fff", l)
        self.stamp()
        xq = list(range(28))

        def xl():
            if xq:
                ks = xq.pop(0)
                self.xload(vr(X0 + 4 * ks), vX, ks, ('x', ks))
        for _ in range(XL):
            xl()
        self.fill.extend(self.stats_load_items(vS, st))
        items = self.stats_items(st, XE, vR)
        P = X0

        def epi(t):
            it = []
            E = lambda s: it.append(lambda s=s: a.e(s))
            last = t == 3
            for i in range(16):
                r = ACC + 16 * t + i
                E(f"v_max_f32 v{r}, 0, v{r}")
            if last:
                for i in range(8):
                    r = ACC + 16 * t + 2 * i
                    E(f"v_pk_mul_f32 v[{r}:{r + 1}], v[{r}:{r + 1}], v[{vR}:{vR + 1}] op_sel_hi:[1,0]")
                for i in range(8):
                    r = ACC + 16 * t + 2 * i
                    E(f"v_pk_mul_f32 v[{r}:{r + 1}], v[{r}:{r + 1}], v[{r}:{r + 1}]")
            else:
                for i in range(16):
                    r = ACC + 16 * t + i
                    E(f"v_mul_f32 v{r}, v{r}, v{vR}")
                for i in range(16):
                    r = ACC + 16 * t + i
                    E(f"v_mul_f32 v{r}, v{r}, v{r}")
            so = f"s{sHST}" if t < 2 else "s9"
            for i in range(8):
                r = ACC + 16 * t + 2 * i
                E(f"v_cvt_pk_bf16_f32 v{P + 8 * t + i}, v{r}, v{r + 1}")
                if i in (3, 7):
                    h = i >> 2
                    it.append(lambda h=h: a.vmem(f"buffer_store_dwordx4 {vr(P + 8 * t + 4 * h)}, v{vL16}, s[4:7], {so} offen offset:{(t & 1) * 2048 + h * 1024}", 'h'))
            return it

        nk = 4 * (28 - R)
        for n, (ks, t) in enumerate(order):
            if n == 40:
                self.drain_fill()
                self.fill.extend(items)
            if n == nk:
                self.drain_fill()
                a.e(f"s_add_u32 s9, s{sHST}, 4096")
            acc = vr(ACC + 16 * t, 16)
            if ks < 28:
                i = lidx[(ks, t)]
                a.wait(vm=[('x', ks)], lg=[('a', i)])
                a.e(f"{MF} {acc}, {vr(RING + 4 * (i % NR))}, {vr(X0 + 4 * ks)}, " + ("0" if ks == 0 else acc))
            else:
                a.e(f"{MF} {acc}, {ar(A_W1X + 4 * t)}, {vr(XE)}, {acc}")
            if n < nk:
                if (n % 3) == 0:
                    xl()
                elif n >= 8:
                    self.pop(1 if n < 40 else 2)
            else:
                q = (n - nk) % (R + 1)
                if t > 0 and q == 0:
                    a.e("s_nop 3")
                elif t > 0 and q == 1:
                    a.e("s_nop 2")
                    self.fill.extend(epi(t - 1))
                else:
                    self.pop(6)
            if ks < 28:
                rd(i + LA)
        self.stamp()
        self.drain_fill()
        a.e("s_nop 7\ns_nop 3") if R < 8 else None
        for f in epi(3):
            f()
        self.publish(sFDW, l)
        a.e("s_barrier")
        self.stamp()

    def phaseE(self, l):
        a = self.a
        a.issued = set()
        ACC, RING, DEPTH, vX0, vX1, vQB = 16, 80, 16, 8, 9, 13
        a.e(f"""
        s_mul_i32 s9, s{sRTC}, {112 * KB}
        s_mul_i32 s10, s{sW}, {28 * KB}
        s_add_u32 s10, s10, {HB}
        s_add_u32 s11, s9, s10
        v_add_u32 v{vX0}, s11, v{vL16}
        s_xor_b32 s9, s{sRTC}, 1
        s_mul_i32 s9, s9, {112 * KB}
        s_add_u32 s11, s9, s10
        v_add_u32 v{vX1}, s11, v{vL16}
        """)
        self.acc_init(ACC, RING, True)
        self.poll(sFDP, f"s[{sME}:{sME + 1}]", l)
        self.stamp()

        def slot(ks): return RING + 8 * (ks % DEPTH)
        q = [(ks, x) for ks in range(28) for x in range(2)]
        wq = self.wq_dma_items(vQB) if l == 0 else []

        def issue():
            if q:
                ks, x = q.pop(0)
                self.xload(vr(slot(ks) + 4 * x), (vX0, vX1)[x], ks, ('x', ks, x))
            elif wq:
                wq.pop(0)()
        for _ in range(OPT("EPRE", 10)):
            issue()
        self.ksplit_loop(ACC, 28, 4, lambda ks, b: ar(A_W2 + 4 * (28 * b + ks)),
                         lambda ks, x: slot(ks) + 4 * x, lambda n: issue() if ((n & 1) == 0 or not q) else None)
        self.stamp()
        while wq:
            wq.pop(0)()
        self.reduce_tail(ACC, RING, XIN, STIN, FE, 0, l == 1)
        if l == 1 and INSTR:
            a.e("s_waitcnt vmcnt(0)")
        self.stamp()

    def build(self):
        a = self.a
        self.setup()
        for l in range(2):
            self.nstamp = 0
            if l == 1:
                a.label("L_layer1")
            self.phaseA(l)
            self.phaseB(l)
            a.e(f"s_cmp_eq_u32 s{sROLE}, 0\ns_cbranch_scc1 " + ("L_norole" if l == 0 else "L_mega_kernel_end"))
            self.phaseC(l)
            self.phaseD(l)
            self.phaseE(l)
            self.flush_stamps(l)

        def norole():
            a.label("L_norole")
            for f in self.wq_dma_items(13):
                f()
            a.e("s_waitcnt vmcnt(0)\ns_branch L_layer1")
        self.k.tail.append(norole)
        return self.k.finish()


HEADER = open(f"cdna_kernels/{NAME}.s.ref").read().split("; Override launch")[0]


def build(path):
    ks = [gen_prep(), Mega().build()]
    out = HEADER
    for kk in ks:
        out += kk.launch() + "\n"
    out += '.amdgcn_target "amdgcn-amd-amdhsa--gfx950"\n.text\n'
    for kk in ks:
        out += kk.a.text()
    out += '.section .rodata,"a"\n'
    for kk in ks:
        out += kk.kd
    open(path, "w").write(out)


if __name__ == "__main__":
    path = sys.argv[1] if len(sys.argv) > 1 else f"cdna_kernels/{NAME}.s"
    build(path)
    print("wrote", path, "ws", WS_SIZE)
```

```python
import sys
NAME = "interleave_layers__softmax_full_mha__dense_activation_squared_relu__prompt"
base = open("mega4.s").read()
def variant(path, tlb, code, inp, wsl):
    b = ["warm_kernel:", "    s_cmp_ge_u32 s2, 256", "    s_cbranch_scc1 L_warm_end"]
    e = lambda t: b.extend("    " + l.strip() for l in t.strip().split("\n"))
    e("""s_load_dwordx4 s[8:11], s[0:1], 0
    s_load_dwordx2 s[12:13], s[0:1], 16
    s_load_dwordx2 s[14:15], s[0:1], 32
    s_load_dwordx2 s[16:17], s[0:1], 48
    s_load_dwordx2 s[18:19], s[0:1], 80
    s_load_dwordx2 s[20:21], s[0:1], 64
    v_lshrrev_b32 v2, 6, v0
    v_and_b32 v0, 63, v0
    s_nop 0
    v_readfirstlane_b32 s3, v2
    s_mov_b32 s7, 0x20000
    s_lshl_b32 s22, s2, 2
    s_add_u32 s22, s22, s3
    s_waitcnt lgkmcnt(0)""")
    bufs = [(8, 2048*448*2), (10, 448*1344*2), (12, 448*448*2), (14, 448*1792*2), (16, 1792*448*2)]
    if tlb:
        e("v_lshlrev_b32 v1, 19, v0\ns_mov_b32 s4, s18\ns_mov_b32 s5, s19\ns_mov_b32 s6, 0x1c00000\nbuffer_load_dword v3, v1, s[4:7], 0 offen")
        e("v_lshlrev_b32 v1, 15, v0")
        for r, n in bufs + [(20, 2048*448*2)]:
            e(f"s_mov_b32 s4, s{r}\ns_mov_b32 s5, s{r+1}\ns_mov_b32 s6, {n}\nbuffer_load_dword v3, v1, s[4:7], 0 offen")
    if inp:
        e("v_and_b32 v1, 15, v0\nv_lshlrev_b32 v1, 7, v1\ns_lshl_b32 s23, s22, 11")
        for r, n in bufs:
            e(f"s_mov_b32 s4, s{r}\ns_mov_b32 s5, s{r+1}\ns_mov_b32 s6, {n}\nbuffer_load_dword v3, v1, s[4:7], s23 offen")
    if wsl:
        e("v_lshlrev_b32 v1, 7, v0\ns_lshl_b32 s23, s22, 13\ns_mov_b32 s4, s18\ns_mov_b32 s5, s19\ns_mov_b32 s6, 0x1a80000")
        for i in range(4):
            e(f"buffer_load_dword v3, v1, s[4:7], s23 offen\ns_add_u32 s23, s23, 0x800000")
    if code:
        e("s_getpc_b64 s[24:25]")
        b.append("L_wpc:")
        e(f"""s_add_u32 s24, s24, {NAME}_kernel-L_wpc
        s_addc_u32 s25, s25, -1
        s_lshr_b32 s23, s2, 3
        s_min_u32 s23, s23, 27
        s_lshl_b32 s23, s23, 11
        v_and_b32 v1, 15, v0
        v_lshlrev_b32 v1, 7, v1
        v_add_u32 v1, s23, v1
        global_load_dword v3, v1, s[24:25]""")
    e("s_waitcnt vmcnt(0)")
    b.append("L_warm_end:")
    e("s_endpgm")
    lines = base.split("\n")
    idx = min(i for i, l in enumerate(lines) if l.startswith("; @launch"))
    lines.insert(idx, "; @launch kernel=warm_kernel grid=(256,1,1) block=(256,1,1) lds=0")
    t = "\n".join(lines)
    t = t.replace('.section .rodata,"a"\n', ".globl warm_kernel\n.p2align 8\n.type warm_kernel,@function\n" + "\n".join(b) + '''
.section .rodata,"a"
.p2align 6
.amdhsa_kernel warm_kernel
  .amdhsa_next_free_vgpr 8
  .amdhsa_next_free_sgpr 32
  .amdhsa_accum_offset 8
  .amdhsa_group_segment_fixed_size 0
  .amdhsa_kernarg_size 88
  .amdhsa_user_sgpr_count 2
  .amdhsa_user_sgpr_kernarg_segment_ptr 1
  .amdhsa_system_sgpr_workgroup_id_x 1
.end_amdhsa_kernel
''')
    open(path, "w").write(t)
variant("w0.s", 0, 0, 0, 0)
variant("w_tlb.s", 1, 0, 0, 0)
variant("w_code.s", 0, 1, 0, 0)
variant("w_inp.s", 0, 0, 1, 0)
variant("w_ws.s", 0, 0, 0, 1)
variant("w_all.s", 1, 1, 1, 1)
```
